```python
import torch

def _softmax(x, axis=-1):
    return torch.softmax(x, dim=axis)
def _gelu(x):
    return torch.nn.functional.gelu(x, approximate="tanh")
def _silu(x):
    return torch.nn.functional.silu(x)
def _sigmoid(x):
    return torch.sigmoid(x)
def _layernorm(x, axis=-1, eps=1e-5):
    m = x.mean(dim=axis, keepdim=True)
    v = x.var(dim=axis, keepdim=True, unbiased=False)
    return (x - m) / torch.sqrt(v + eps)
def _scatter_add(tgt, idx, src, axis=0):
    return tgt.clone().index_add_(axis, idx, src)
def _segment_sum(src, seg, n):
    out = torch.zeros((n,) + src.shape[1:], dtype=src.dtype)
    return out.index_add_(0, seg, src)
def _pad(x, pw):
    flat = tuple(v for pair in reversed(pw) for v in pair)
    return torch.nn.functional.pad(x, flat)

kernel_name = 'interleave_layers__ssm_conv_s4d__dense_activation_relu__prompt'

def setup_inputs():

    _w = (lambda a: (lambda t: t.to(torch.bfloat16) if t.is_floating_point() else t)(torch.as_tensor(a)))
    def _A_setup():
        Bsz, L, D, N = 1, 2048, 512, 128
        return {
            "u": _w((lambda *s: torch.randn(*s, dtype=torch.bfloat16) * 0.05)(Bsz, L, D)),
            "log_A_real": _w((lambda *s: torch.randn(*s, dtype=torch.bfloat16) * 3.2)(D, N) * 0.5),
            "A_imag": _w((lambda *s: torch.randn(*s, dtype=torch.bfloat16) * 0.2)(D, N) * 3.14),
            "C_real": _w((lambda *s: torch.randn(*s, dtype=torch.bfloat16) * 0.2)(D, N) / N ** 0.5),
            "C_imag": _w((lambda *s: torch.randn(*s, dtype=torch.bfloat16) * 0.2)(D, N) / N ** 0.5),
            "log_dt": _w((lambda *s: torch.randn(*s, dtype=torch.bfloat16) * 0.2)(D) * 0.5 - 4.0),
            "D_skip": _w((lambda *s: torch.randn(*s, dtype=torch.bfloat16) * 0.2)(D)),
        }
    _A_in = _A_setup()

    def _B_setup():
        B, S, D, Dff = 1, 2048, 512, 1792
        return {
            "x": _w((lambda *s: torch.randn(*s, dtype=torch.bfloat16) * 0.05)(B, S, D)),
            "w1": _w((lambda *s: torch.randn(*s, dtype=torch.bfloat16) * 0.05)(D, Dff)),
            "w2": _w((lambda *s: torch.randn(*s, dtype=torch.bfloat16) * 0.05)(Dff, D)),
        }
    _B_in = _B_setup()

    return {
        "A_u": _A_in["u"],
        "A_log_A_real": _A_in["log_A_real"],
        "A_A_imag": _A_in["A_imag"],
        "A_C_real": _A_in["C_real"],
        "A_C_imag": _A_in["C_imag"],
        "A_log_dt": _A_in["log_dt"],
        "A_D_skip": _A_in["D_skip"],
        "B_x": _B_in["x"],
        "B_w1": _B_in["w1"],
        "B_w2": _B_in["w2"],
    }

def reference(A_u, A_log_A_real, A_A_imag, A_C_real, A_C_imag, A_log_dt, A_D_skip, B_x, B_w1, B_w2):
    def _A_ref(u, log_A_real, A_imag, C_real, C_imag, log_dt, D_skip):
        L = u.shape[1]
        dt = torch.exp(log_dt)
        A = -torch.exp(log_A_real) + 1j * A_imag
        C = (C_real + 1j * C_imag) * dt[:, None]
        pos = (lambda x, dt: x.to(dt))(torch.arange(L), log_dt.dtype)
        P = torch.exp((A * dt[:, None])[:, :, None] * pos[None, None, :])
        K = 2.0 * torch.einsum("dn,dnl->dl", C, P).real
        L2 = 2 * L
        u_t = (lambda x, *d: x.permute(*d))(u, 0, 2, 1)
        Kf = (lambda x, *a, **k: torch.fft.rfft(x.float(), *a, **k))(K, L2)
        Uf = (lambda x, *a, **k: torch.fft.rfft(x.float(), *a, **k))(u_t, L2)
        y = (lambda x, *a, **k: torch.fft.irfft(x, *a, **k).to(torch.bfloat16))(Uf * Kf[None, :, :], L2)[:, :, :L]
        y = (lambda x, *d: x.permute(*d))(y, 0, 2, 1)
        return y + u * D_skip[None, None, :]

    def _B_ref(x, w1, w2):
        h = torch.einsum("bsd,df->bsf", x, w1)
        zero = torch.zeros_like(h)
        h = torch.maximum(h, zero)
        return torch.einsum("bsf,fd->bsd", h, w2)

    x = A_u
    x = x + _A_ref(_layernorm(x, axis=-1), A_log_A_real, A_A_imag, A_C_real, A_C_imag, A_log_dt, A_D_skip)
    x = x + _B_ref(_layernorm(x, axis=-1), B_w1, B_w2)
    x = x + _A_ref(_layernorm(x, axis=-1), A_log_A_real, A_A_imag, A_C_real, A_C_imag, A_log_dt, A_D_skip)
    x = x + _B_ref(_layernorm(x, axis=-1), B_w1, B_w2)
    return x
```

```python
class Asm:
    def __init__(self):
        self.lines = []
        self.vm = 0
        self.lg = 0
        self.uid = 0
    def __call__(self, s):
        self.lines.append("    " + s)
    def raw(self, s):
        self.lines.append(s)
    def label(self, l):
        self.lines.append(l + ":")
    def newlabel(self, base):
        self.uid += 1
        return "L_%s_%d" % (base, self.uid)
    def comment(self, s):
        self.lines.append("    ; " + s)
    def vmem(self, s):
        self(s); self.vm += 1; return self.vm - 1
    def lds(self, s):
        self(s); self.lg += 1; return self.lg - 1
    def wait_vm(self, idx):
        n = self.vm - idx - 1
        assert 0 <= n <= 63, n
        self("s_waitcnt vmcnt(%d)" % n)
    def wait_lg(self, idx):
        n = self.lg - idx - 1
        assert 0 <= n, n
        n = min(n, 15)
        self("s_waitcnt lgkmcnt(%d)" % n)
    def wait_all(self):
        self("s_waitcnt vmcnt(0) lgkmcnt(0)")
    def nop(self, n):
        while n > 0:
            k = min(n, 16)
            self("s_nop %d" % (k - 1))
            n -= k
    def srd(self, d, b, size):
        self("s_mov_b32 s%d, s%d" % (d, b))
        self("s_and_b32 s%d, s%d, 0xffff" % (d + 1, b + 1))
        self("s_mov_b32 s%d, 0x%x" % (d + 2, size))
        self("s_mov_b32 s%d, 0x00020000" % (d + 3))
    def bfr(self, d, s):
        self("v_cvt_pk_bf16_f32 v%d, v%d, v%d" % (d, s, s))
        self("v_lshlrev_b32 v%d, 16, v%d" % (d, d))
    def text(self):
        return "\n".join(self.lines) + "\n"

def vr(a, n=None):
    if n is None or n == 1:
        return "v%d" % a
    return "v[%d:%d]" % (a, a + n - 1)
def ar(a, n=None):
    if n is None or n == 1:
        return "a%d" % a
    return "a[%d:%d]" % (a, a + n - 1)
def sr(a, n=None):
    if n is None or n == 1:
        return "s%d" % a
    return "s[%d:%d]" % (a, a + n - 1)

def kernel_header(name):
    return """.globl %s
.p2align 8
.type %s,@function
%s:
""" % (name, name, name)

def kernel_desc(name, vgpr, agpr=0, sgpr=96):
    acc = (vgpr + 3) // 4 * 4
    nfv = acc + agpr if agpr else vgpr
    return """.p2align 6
.amdhsa_kernel %s
  .amdhsa_next_free_vgpr %d
  .amdhsa_next_free_sgpr %d
  .amdhsa_accum_offset %d
  .amdhsa_group_segment_fixed_size 0
  .amdhsa_kernarg_size 104
  .amdhsa_user_sgpr_count 2
  .amdhsa_user_sgpr_kernarg_segment_ptr 1
  .amdhsa_system_sgpr_workgroup_id_x 1
  .amdhsa_float_denorm_mode_32 3
.end_amdhsa_kernel
""" % (name, nfv, sgpr, acc)
```

```python
from asmlib import *
from gen_prep import *

EPS = 0x3727c5ac

def emit_ln_scalars(a, S, Q, M, RS, SB, t0):
    a("v_mul_f32 v%d, 0x3b000000, v%d" % (S, S))
    a("v_mul_f32 v%d, 0x3b000000, v%d" % (Q, Q))
    a("v_fma_f32 v%d, -v%d, v%d, v%d" % (Q, S, S, Q))
    a("v_max_f32 v%d, 0, v%d" % (Q, Q))
    a.bfr(M, S)
    a.bfr(Q, Q)
    a("v_add_f32 v%d, 0x%x, v%d" % (Q, EPS, Q))
    a.bfr(Q, Q)
    a("v_sqrt_f32 v%d, v%d" % (Q, Q))
    a.nop(1)
    a.bfr(SB, Q)
    a("v_rcp_f32 v%d, v%d" % (RS, SB))

def gen_conv(name, XIN, XOUT, ST):
    a = Asm()
    a.raw(kernel_header(name))
    UB = 512; US = 4608
    XS = 9728; XSS = 4096
    KR = 17920; KRS = 4224
    SCR = 26368
    a("s_cmp_ge_u32 s2, 256")
    a("s_cbranch_scc1 L_%s_end" % name)
    a("s_load_dwordx2 s[12:13], s[0:1], 96")
    a("s_load_dwordx2 s[14:15], s[0:1], 48")
    common_ids(a)
    a("s_waitcnt lgkmcnt(0)")
    a.srd(4, 12, WS_SIZE)
    a.srd(8, 14, 1024)
    a("v_lshlrev_b32 v5, 9, v0")
    a("s_mov_b32 s16, 0x%x" % ST)
    a("v_lshlrev_b32 v6, 4, v0")
    a("s_lshl_b32 s17, s2, 13")
    a("s_add_u32 s18, s17, 0x%x" % XIN)
    a("s_add_u32 s19, s18, 4096")
    ix0 = a.vmem("buffer_load_dwordx4 v[32:35], v6, s[4:7], s18 offen")
    ix1 = a.vmem("buffer_load_dwordx4 v[36:39], v6, s[4:7], s19 offen")
    a("s_mul_i32 s20, s2, %d" % (2 * KSTRIDE))
    a("s_add_u32 s20, s20, 0x%x" % KREV)
    a("s_add_u32 s21, s20, %d" % KSTRIDE)
    ik0 = a.vmem("buffer_load_dwordx4 v[40:43], v6, s[4:7], s20 offen")
    ik1 = a.vmem("buffer_load_dwordx4 v[44:47], v6, s[4:7], s21 offen")
    a("s_add_u32 s20, s20, 4096")
    a("s_add_u32 s21, s21, 4096")
    a("v_and_b32 v7, 7, v0")
    a("v_lshlrev_b32 v7, 4, v7")
    ik2 = a.vmem("buffer_load_dwordx4 v[48:51], v7, s[4:7], s20 offen")
    ik3 = a.vmem("buffer_load_dwordx4 v[52:55], v7, s[4:7], s21 offen")
    a("s_lshl_b32 s22, s2, 2")
    a("v_mov_b32 v8, 0")
    idk = a.vmem("buffer_load_dword v56, v8, s[8:11], s22 offen")
    ist = []
    for k in range(32):
        ist.append(a.vmem("buffer_load_dwordx4 v[%d:%d], v5, s[4:7], s16 offen offset:%d" % (64 + 4 * k, 67 + 4 * k, 16 * k)))
    for k in range(4):
        a("v_mov_b32 v%d, 0" % (12 + k))
    a("v_cmp_gt_u32 vcc, 32, v0")
    a("s_and_saveexec_b64 s[24:25], vcc")
    a("ds_write_b128 v6, v[12:15] offset:%d" % UB)
    a("ds_write_b128 v6, v[12:15] offset:%d" % (UB + US))
    a("s_mov_b64 exec, s[24:25]")
    a.wait_vm(ik3)
    a("ds_write_b128 v6, v[32:35] offset:%d" % XS)
    a("ds_write_b128 v6, v[36:39] offset:%d" % (XS + XSS))
    a("ds_write_b128 v6, v[40:43] offset:%d" % KR)
    a("ds_write_b128 v6, v[44:47] offset:%d" % (KR + KRS))
    a("v_cmp_gt_u32 vcc, 8, v0")
    a("s_and_saveexec_b64 s[24:25], vcc")
    a("ds_write_b128 v7, v[48:51] offset:%d" % (KR + 4096))
    a("ds_write_b128 v7, v[52:55] offset:%d" % (KR + KRS + 4096))
    a("s_mov_b64 exec, s[24:25]")
    for l in range(8):
        b = 64 + 16 * l
        a.wait_vm(ist[4 * l + 3])
        for k in range(1, 8):
            a("v_pk_add_f32 v[%d:%d], v[%d:%d], v[%d:%d]" % (b, b + 1, b, b + 1, b + 2 * k, b + 2 * k + 1))
        emit_ln_scalars(a, b, b + 1, 200 + l, 208 + l, 216 + l, b + 2)
    a.nop(1)
    for ch in range(2):
        xb = 32 + 4 * ch
        for l in range(8):
            src = xb + l // 2
            d = 16 + l
            if l % 2 == 0:
                a("v_lshlrev_b32 v%d, 16, v%d" % (d, src))
            else:
                a("v_and_b32 v%d, 0xffff0000, v%d" % (d, src))
            a("v_sub_f32 v%d, v%d, v%d" % (d, d, 200 + l))
        for l in range(8):
            a.bfr(16 + l, 16 + l)
        for l in range(8):
            a("v_mul_f32 v%d, v%d, v%d" % (24 + l, 16 + l, 208 + l))
        for l in range(8):
            a("v_fma_f32 v%d, -v%d, v%d, v%d" % (16 + l, 24 + l, 216 + l, 16 + l))
        for l in range(8):
            a("v_fma_f32 v%d, v%d, v%d, v%d" % (24 + l, 16 + l, 208 + l, 24 + l))
        for k in range(4):
            a("v_cvt_pk_bf16_f32 v%d, v%d, v%d" % (12 + k, 24 + 2 * k, 25 + 2 * k))
        a("ds_write_b128 v6, v[12:15] offset:%d" % (UB + ch * US + 512))
    a("s_lshr_b32 s26, s3, 1")
    a("s_and_b32 s27, s3, 1")
    a("v_lshlrev_b32 v9, 3, v3")
    a("v_sub_u32 v9, v9, v2")
    a("v_lshlrev_b32 v9, 1, v9")
    a("s_mul_i32 s28, s26, %d" % KRS)
    a("s_add_u32 s28, s28, %d" % (KR + 2 * 2031 - 512 * 7 - 32 * 14))
    a("s_lshl_b32 s29, s27, 8")
    a("s_sub_u32 s28, s28, s29")
    a("v_add_u32 v9, s28, v9")
    a("v_lshlrev_b32 v10, 5, v2")
    a("v_lshl_add_u32 v10, v3, 4, v10")
    a("s_mul_i32 s28, s26, %d" % US)
    a("s_add_u32 s28, s28, %d" % (UB + 32))
    a("s_sub_u32 s28, s28, s29")
    a("v_add_u32 v10, s28, v10")
    ACC = 64
    for r in range(ACC, ACC + 32):
        a("v_mov_b32 v%d, 0" % r)
    a("s_waitcnt lgkmcnt(0)")
    a("s_barrier")
    a.lg = 0
    AF = [96, 160]; BF = [128, 192]
    def issue(e):
        buf = e % 2
        idx = []
        for k in range(8):
            idx.append(a.lds("ds_read_b128 v[%d:%d], v10 offset:%d" % (BF[buf] + 4 * k, BF[buf] + 4 * k + 3, 512 * k + 32 * (14 - 2 * e))))
            c1 = k
            idx.append(a.lds("ds_read_b128 v[%d:%d], v9 offset:%d" % (AF[buf] + 4 * c1, AF[buf] + 4 * c1 + 3, 512 * (7 - c1) + 32 * (14 - 2 * e))))
        return idx
    pend = issue(0)
    for e in range(4):
        buf = e % 2
        cur = pend
        if e < 3:
            pend = issue(e + 1)
        a.wait_lg(cur[-1])
        for c1 in range(8):
            for J in range(c1, 8):
                a("v_mfma_f32_16x16x32_bf16 v[%d:%d], v[%d:%d], v[%d:%d], v[%d:%d]" % (
                    ACC + 4 * J, ACC + 4 * J + 3, AF[buf] + 4 * c1, AF[buf] + 4 * c1 + 3,
                    BF[buf] + 4 * (J - c1), BF[buf] + 4 * (J - c1) + 3, ACC + 4 * J, ACC + 4 * J + 3))
    a("v_lshlrev_b32 v11, 4, v1")
    a("s_lshl_b32 s28, s3, 12")
    a("v_add_u32 v12, s28, v11")
    a("s_xor_b32 s28, s3, 1")
    a("s_lshl_b32 s28, s28, 12")
    a("v_add_u32 v13, s28, v11")
    a("v_lshlrev_b32 v14, 5, v2")
    a("v_lshl_add_u32 v14, v3, 3, v14")
    a("s_lshl_b32 s28, s27, 11")
    a("v_add_u32 v14, s28, v14")
    a("s_mul_i32 s28, s26, %d" % US)
    a("v_add_u32 v15, s28, v14")
    a("s_lshl_b32 s28, s26, 12")
    a("v_add_u32 v16, s28, v14")
    for Jl in range(4):
        a("ds_read_b64 v[%d:%d], v15 offset:%d" % (32 + 2 * Jl, 33 + 2 * Jl, UB + 512 + 512 * Jl))
        a("ds_read_b64 v[%d:%d], v16 offset:%d" % (40 + 2 * Jl, 41 + 2 * Jl, XS + 512 * Jl))
    a.nop(8)
    a("s_cmp_eq_u32 s27, 0")
    a("s_cbranch_scc1 L_%s_h0" % name)
    for Jl in range(4):
        a("ds_write_b128 v12, v[%d:%d] offset:%d" % (ACC + 4 * Jl, ACC + 4 * Jl + 3, SCR + 1024 * Jl))
    for r in range(16):
        a("v_mov_b32 v%d, v%d" % (ACC + r, ACC + 16 + r))
    a("s_branch L_%s_h1" % name)
    a.label("L_%s_h0" % name)
    for Jl in range(4):
        a("ds_write_b128 v12, v[%d:%d] offset:%d" % (ACC + 16 + 4 * Jl, ACC + 16 + 4 * Jl + 3, SCR + 1024 * Jl))
    a.label("L_%s_h1" % name)
    a("s_waitcnt lgkmcnt(0)")
    a("s_barrier")
    for Jl in range(4):
        a("ds_read_b128 v[%d:%d], v13 offset:%d" % (96 + 4 * Jl, 99 + 4 * Jl, SCR + 1024 * Jl))
    a("s_waitcnt vmcnt(0)")
    a("v_lshlrev_b32 v57, 16, v56")
    a("v_and_b32 v58, 0xffff0000, v56")
    a("s_cmp_eq_u32 s26, 0")
    a("s_cbranch_scc1 L_%s_c0" % name)
    a("v_mov_b32 v57, v58")
    a.label("L_%s_c0" % name)
    a("s_waitcnt lgkmcnt(0)")
    a("s_add_u32 s18, s17, 0x%x" % XOUT)
    for Jl in range(4):
        for i in range(4):
            y = ACC + 4 * Jl + i
            a("v_add_f32 v%d, v%d, v%d" % (y, y, 96 + 4 * Jl + i))
            us = 32 + 2 * Jl + i // 2
            xs = 40 + 2 * Jl + i // 2
            if i % 2 == 0:
                a("v_lshlrev_b32 v%d, 16, v%d" % (20 + i, us))
                a("v_lshlrev_b32 v%d, 16, v%d" % (24 + i, xs))
            else:
                a("v_and_b32 v%d, 0xffff0000, v%d" % (20 + i, us))
                a("v_and_b32 v%d, 0xffff0000, v%d" % (24 + i, xs))
            a("v_mul_f32 v%d, v%d, v57" % (20 + i, 20 + i))
        for i in range(4):
            a.bfr(ACC + 4 * Jl + i, ACC + 4 * Jl + i)
            a.bfr(20 + i, 20 + i)
        for i in range(4):
            a("v_add_f32 v%d, v%d, v%d" % (20 + i, 20 + i, ACC + 4 * Jl + i))
        for i in range(4):
            a.bfr(20 + i, 20 + i)
        for i in range(4):
            a("v_add_f32 v%d, v%d, v%d" % (20 + i, 20 + i, 24 + i))
        a("v_cvt_pk_bf16_f32 v%d, v20, v21" % (48 + 2 * Jl))
        a("v_cvt_pk_bf16_f32 v%d, v22, v23" % (49 + 2 * Jl))
        a("buffer_store_dwordx2 v[%d:%d], v16, s[4:7], s18 offen offset:%d" % (48 + 2 * Jl, 49 + 2 * Jl, 512 * Jl))
    a.label("L_%s_end" % name)
    a("s_endpgm")
    return a.text(), kernel_desc(name, 256), SCR + 16384
```

```python
from asmlib import *
from gen_prep import *
from gen_conv import emit_ln_scalars

def gen_gemm1(name, XIN):
    a = Asm()
    a.raw(kernel_header(name))
    STL = 131072
    a("s_cmp_ge_u32 s2, 224")
    a("s_cbranch_scc1 L_%s_end" % name)
    a("s_load_dwordx2 s[12:13], s[0:1], 96")
    common_ids(a)
    a("s_and_b32 s16, s2, 7")
    a("s_lshl_b32 s16, s16, 1")
    a("s_bfe_u32 s17, s2, 0x10003")
    a("s_add_u32 s16, s16, s17")
    a("s_lshr_b32 s17, s2, 4")
    a("s_waitcnt lgkmcnt(0)")
    a.srd(4, 12, WS_SIZE)
    for e in range(2):
        a("v_add_u32 v7, %d, v3" % (4 * e))
        a("v_lshlrev_b32 v8, 1, v7")
        a("v_xor_b32 v8, v8, v2")
        a("v_lshlrev_b32 v8, 4, v8")
        a("v_lshl_add_u32 v%d, v7, 12, v8" % (5 + e))
    a("s_lshl_b32 s18, s3, 15")
    a("s_lshl_b32 s19, s16, 8")
    a("s_add_u32 s18, s18, s19")
    a("s_add_u32 s18, s18, 0x%x" % XIN)
    a("s_lshl_b32 s20, s3, 11")
    a("v_lshlrev_b32 v9, 4, v1")
    a("s_lshl_b32 s21, s17, 2")
    a("s_add_u32 s21, s21, s3")
    a("s_mov_b32 s24, s21")
    a("s_lshl_b32 s21, s21, 15")
    a("s_add_u32 s21, s21, 0x%x" % W1F)
    a("v_lshlrev_b32 v10, 4, v3")
    a("s_lshl_b32 s22, s24, 7")
    a("s_add_u32 s22, s22, 0x%x" % CS)
    CSR = 240
    a.vmem("buffer_load_dwordx4 v[%d:%d], v10, s[4:7], s22 offen" % (CSR, CSR + 3))
    a.vmem("buffer_load_dwordx4 v[%d:%d], v10, s[4:7], s22 offen offset:64" % (CSR + 4, CSR + 7))
    LOOK = 8
    WR = 168
    NW = 9
    last = {}
    def issue(ks):
        for e in range(2):
            a("s_add_u32 s23, s20, %d" % (ks * 8192 + e * 1024))
            a("s_mov_b32 m0, s23")
            a.nop(1)
            a.vmem("buffer_load_dwordx4 v%d, s[4:7], s18 offen lds" % (5 + e))
        a("s_add_u32 s18, s18, %d" % (32 * 4096))
        w = WR + (ks % NW) * 8
        a.vmem("buffer_load_dwordx4 v[%d:%d], v9, s[4:7], s21 offen" % (w, w + 3))
        last[ks] = a.vmem("buffer_load_dwordx4 v[%d:%d], v9, s[4:7], s21 offen offset:1024" % (w + 4, w + 7))
        a("s_add_u32 s21, s21, 2048")
    for ks in range(LOOK):
        issue(ks)
    a("v_lshrrev_b32 v20, 2, v2")
    a("v_and_b32 v21, 3, v2")
    a("v_lshl_add_u32 v22, v3, 2, v20")
    a("v_and_b32 v23, 7, v22")
    a("v_lshlrev_b32 v22, 8, v22")
    a("v_and_b32 v24, 1, v21")
    a("v_lshl_add_u32 v22, v24, 3, v22")
    a("v_lshrrev_b32 v24, 1, v21")
    for lam in range(8):
        a("v_xor_b32 v25, %d, v23" % lam)
        a("v_lshl_add_u32 v25, v25, 1, v24")
        a("v_lshl_add_u32 v%d, v25, 4, v22" % (12 + lam))
    ACC = 28
    BF = [96, 128]
    for r in range(ACC, ACC + 64):
        a("v_mov_b32 v%d, 0" % r)
    SS = 160
    for r in range(SS, SS + 4):
        a("v_mov_b32 v%d, 0" % r)
    a("s_mov_b32 s25, 0x%x" % ONES_BF)
    a("v_mov_b32 v164, s25")
    def rd(ks):
        buf = ks % 2
        if ks == 8:
            for lam in range(8):
                a("v_add_u32 v%d, 0x10000, v%d" % (12 + lam, 12 + lam))
        idx = None
        for lam in range(8):
            for rho in range(2):
                r = BF[buf] + 4 * lam + 2 * rho
                idx = a.lds("ds_read_b64_tr_b16 v[%d:%d], v%d offset:%d" % (r, r + 1, 12 + lam, (ks % 8) * 8192 + rho * 4096))
        return idx
    a.wait_vm(last[0])
    a("s_barrier")
    pend = rd(0)
    for ks in range(16):
        buf = ks % 2
        cur = pend
        if ks + 1 < 16:
            a.wait_vm(last[ks + 1])
            a("s_barrier")
            pend = rd(ks + 1)
        if ks + LOOK < 16:
            issue(ks + LOOK)
        a.wait_lg(cur)
        w = WR + (ks % NW) * 8
        if ks == 15:
            pass
        k = 0
        for lam in range(8):
            for T in range(2):
                c = ACC + (T * 8 + lam) * 4
                a("v_mfma_f32_16x16x32_bf16 v[%d:%d], v[%d:%d], v[%d:%d], v[%d:%d]" % (
                    c, c + 3, w + 4 * T, w + 4 * T + 3, BF[buf] + 4 * lam, BF[buf] + 4 * lam + 3, c, c + 3))
        for wv in range(4):
            lbl = a.newlabel(name + "_st")
            a("s_cmp_lg_u32 s3, %d" % wv)
            a("s_cbranch_scc1 %s" % lbl)
            for h in range(2):
                b = BF[buf] + 4 * (2 * wv + h)
                for k in range(4):
                    a("v_dot2_f32_bf16 v%d, v%d, v164, v%d" % (SS + 2 * h, b + k, SS + 2 * h))
                    a("v_dot2_f32_bf16 v%d, v%d, v%d, v%d" % (SS + 2 * h + 1, b + k, b + k, SS + 2 * h + 1))
            a.label(lbl)
    a.nop(4)
    for r in range(SS, SS + 4):
        a("v_mov_b32 v%d, v%d" % (r + 8, r))
    a.nop(2)
    for r in range(SS, SS + 4):
        a("v_permlane32_swap_b32 v%d, v%d" % (r, r + 8))
    a.nop(1)
    for r in range(SS, SS + 4):
        a("v_add_f32 v%d, v%d, v%d" % (r, r, r + 8))
    for r in range(SS, SS + 4):
        a("v_mov_b32 v%d, v%d" % (r + 8, r))
    a.nop(2)
    for r in range(SS, SS + 4):
        a("v_permlane16_swap_b32 v%d, v%d" % (r, r + 8))
    a.nop(1)
    for r in range(SS, SS + 4):
        a("v_add_f32 v%d, v%d, v%d" % (r, r, r + 8))
    for h in range(2):
        emit_ln_scalars(a, SS + 2 * h, SS + 2 * h + 1, 176 + 2 * h, 177 + 2 * h, 180, 181)
    a("v_lshlrev_b32 v20, 3, v2")
    a("v_add_u32 v20, 0x%x, v20" % STL)
    a("s_lshl_b32 s25, s3, 8")
    a("v_add_u32 v21, s25, v20")
    a("v_cmp_eq_u32 vcc, 0, v3")
    a("s_and_saveexec_b64 s[26:27], vcc")
    a("ds_write_b64 v21, v[176:177] offset:%d" % 0)
    a("ds_write_b64 v21, v[178:179] offset:%d" % 128)
    a("s_mov_b64 exec, s[26:27]")
    a("s_waitcnt lgkmcnt(0)")
    a("s_barrier")
    for lam in range(8):
        a("ds_read_b64 v[%d:%d], v20 offset:%d" % (96 + 2 * lam, 97 + 2 * lam, lam * 128))
    a("s_mul_i32 s25, s16, %d" % (8 * 56))
    a("s_add_u32 s25, s25, s24")
    a("s_lshl_b32 s25, s25, 10")
    a("s_add_u32 s25, s25, 0x%x" % HB)
    a("s_waitcnt lgkmcnt(0)")
    for lam in range(8):
        m = 96 + 2 * lam; rs = m + 1
        for T in range(2):
            c = ACC + (T * 8 + lam) * 4
            for i in range(4):
                a("v_fma_f32 v%d, -v%d, v%d, v%d" % (c + i, m, CSR + 4 * T + i, c + i))
            for i in range(4):
                a("v_mul_f32 v%d, v%d, v%d" % (c + i, c + i, rs))
            for i in range(4):
                a("v_max_f32 v%d, 0, v%d" % (c + i, c + i))
            o = 128 + 4 * (lam % 4) + 2 * T
            a("v_cvt_pk_bf16_f32 v%d, v%d, v%d" % (o, c, c + 1))
            a("v_cvt_pk_bf16_f32 v%d, v%d, v%d" % (o + 1, c + 2, c + 3))
        o = 128 + 4 * (lam % 4)
        a("buffer_store_dwordx4 v[%d:%d], v9, s[4:7], s25 offen" % (o, o + 3))
        a("s_add_u32 s25, s25, %d" % (56 * 1024))
    a.label("L_%s_end" % name)
    a("s_endpgm")
    return a.text(), kernel_desc(name, 248), 131072 + 1024

def gen_gemm2(name, XRES, XOUT, STOUT, final):
    a = Asm()
    a.raw(kernel_header(name))
    RS = 272; RW = 64 * RS
    OT = 0; RB = 9216
    a("s_cmp_ge_u32 s2, 256")
    a("s_cbranch_scc1 L_%s_end" % name)
    a("s_load_dwordx2 s[12:13], s[0:1], 96")
    if final:
        a("s_load_dwordx2 s[14:15], s[0:1], 80")
    common_ids(a)
    a("s_and_b32 s16, s2, 7")
    a("s_lshl_b32 s16, s16, 2")
    a("s_bfe_u32 s17, s2, 0x20003")
    a("s_add_u32 s16, s16, s17")
    a("s_lshr_b32 s17, s2, 5")
    a("s_waitcnt lgkmcnt(0)")
    a.srd(4, 12, WS_SIZE)
    if final:
        a.srd(8, 14, 0x200000)
    a("v_lshlrev_b32 v5, 4, v1")
    for t in range(1, 4):
        a("v_add_u32 v%d, %d, v5" % (5 + t, t * 57344))
    a("s_mul_i32 s18, s16, %d" % (4 * 56))
    a("s_mul_i32 s19, s3, 14")
    a("s_add_u32 s18, s18, s19")
    a("s_lshl_b32 s18, s18, 10")
    a("s_add_u32 s18, s18, 0x%x" % HB)
    a("s_mul_i32 s20, s17, 56")
    a("s_add_u32 s20, s20, s19")
    a("s_lshl_b32 s20, s20, 12")
    a("s_add_u32 s20, s20, 0x%x" % W2F)
    DEPTH = 7
    RING = 24
    last = {}
    def issue(ks):
        b = RING + (ks % DEPTH) * 32
        for t in range(4):
            a.vmem("buffer_load_dwordx4 v[%d:%d], v%d, s[4:7], s18 offen" % (b + 4 * t, b + 4 * t + 3, 5 + t))
        for t in range(4):
            last[ks] = a.vmem("buffer_load_dwordx4 v[%d:%d], v5, s[4:7], s20 offen offset:%d" % (b + 16 + 4 * t, b + 19 + 4 * t, 1024 * t))
        a("s_add_u32 s18, s18, 1024")
        a("s_add_u32 s20, s20, 4096")
    for ks in range(DEPTH):
        issue(ks)
    for r in range(64):
        a("v_accvgpr_write_b32 a%d, 0" % r)
    for ks in range(14):
        a.wait_vm(last[ks])
        b = RING + (ks % DEPTH) * 32
        for ta in range(4):
            for tb in range(4):
                c = (ta * 4 + tb) * 4
                a("v_mfma_f32_16x16x32_bf16 a[%d:%d], v[%d:%d], v[%d:%d], a[%d:%d]" % (
                    c, c + 3, b + 4 * ta, b + 4 * ta + 3, b + 16 + 4 * tb, b + 19 + 4 * tb, c, c + 3))
        if ks + DEPTH < 14:
            issue(ks + DEPTH)
    a("v_lshlrev_b32 v9, 12, v1")
    a("s_lshl_b32 s21, s17, 18")
    a("s_lshl_b32 s22, s16, 7")
    a("s_add_u32 s21, s21, s22")
    a("s_lshl_b32 s22, s3, 5")
    a("s_add_u32 s21, s21, s22")
    a("s_add_u32 s22, s21, 0x%x" % XRES)
    ir = a.vmem("buffer_load_dwordx4 v[24:27], v9, s[4:7], s22 offen")
    ir = a.vmem("buffer_load_dwordx4 v[28:31], v9, s[4:7], s22 offen offset:16")
    a("v_mul_u32_u24 v10, %d, v2" % RS)
    a("v_lshl_add_u32 v10, v3, 4, v10")
    a("s_mul_i32 s23, s3, %d" % RW)
    a("s_add_u32 s23, s23, %d" % RB)
    a("v_add_u32 v10, s23, v10")
    a.nop(8)
    for ta in range(4):
        for tb in range(4):
            c = (ta * 4 + tb) * 4
            a("ds_write_b128 v10, a[%d:%d] offset:%d" % (c, c + 3, tb * 16 * RS + ta * 64))
    a("s_waitcnt lgkmcnt(0)")
    a("s_barrier")
    a("v_mul_u32_u24 v11, %d, v1" % RS)
    a("s_lshl_b32 s23, s3, 6")
    a("v_add_u32 v11, s23, v11")
    for p in range(4):
        for k in range(4):
            a("ds_read_b128 v[%d:%d], v11 offset:%d" % (32 + 16 * p + 4 * k, 35 + 16 * p + 4 * k, RB + p * RW + 16 * k))
    a("s_waitcnt lgkmcnt(0)")
    for k in range(16):
        a("v_add_f32 v%d, v%d, v%d" % (32 + k, 32 + k, 48 + k))
        a("v_add_f32 v%d, v%d, v%d" % (64 + k, 64 + k, 80 + k))
    for k in range(16):
        a("v_add_f32 v%d, v%d, v%d" % (32 + k, 32 + k, 64 + k))
    for k in range(16):
        a.bfr(32 + k, 32 + k)
    a.wait_vm(ir)
    for k in range(16):
        src = 24 + k // 2
        if k % 2 == 0:
            a("v_lshlrev_b32 v%d, 16, v%d" % (48 + k, src))
        else:
            a("v_and_b32 v%d, 0xffff0000, v%d" % (48 + k, src))
        a("v_add_f32 v%d, v%d, v%d" % (32 + k, 32 + k, 48 + k))
    for k in range(8):
        a("v_cvt_pk_bf16_f32 v%d, v%d, v%d" % (64 + k, 32 + 2 * k, 33 + 2 * k))
    if not final:
        a("s_add_u32 s22, s21, 0x%x" % XOUT)
        a("buffer_store_dwordx4 v[64:67], v9, s[4:7], s22 offen")
        a("buffer_store_dwordx4 v[68:71], v9, s[4:7], s22 offen offset:16")
        for k in range(16):
            src = 64 + k // 2
            if k % 2 == 0:
                a("v_lshlrev_b32 v%d, 16, v%d" % (32 + k, src))
            else:
                a("v_and_b32 v%d, 0xffff0000, v%d" % (32 + k, src))
            a("v_mul_f32 v%d, v%d, v%d" % (48 + k, 32 + k, 32 + k))
        a("s_barrier")
        a("v_lshlrev_b32 v12, 2, v1")
        a("s_mul_i32 s23, s3, %d" % RW)
        a("s_add_u32 s23, s23, %d" % RB)
        a("v_add_u32 v12, s23, v12")
        for k in range(32):
            a("ds_write_b32 v12, v%d offset:%d" % (32 + k, k * 260))
        a("s_waitcnt lgkmcnt(0)")
        a("v_and_b32 v13, 31, v1")
        a("v_mul_u32_u24 v13, 260, v13")
        a("v_lshrrev_b32 v14, 5, v1")
        a("v_lshl_add_u32 v13, v14, 7, v13")
        a("v_add_u32 v13, s23, v13")
        for c in range(32):
            a("ds_read_b32 v%d, v13 offset:%d" % (96 + c, 4 * c))
        a("s_waitcnt lgkmcnt(0)")
        n = 32
        while n > 1:
            n //= 2
            for c in range(n):
                a("v_add_f32 v%d, v%d, v%d" % (96 + c, 96 + c, 96 + n + c))
        a("v_mov_b32 v97, v96")
        a.nop(2)
        a("v_permlane32_swap_b32 v96, v97")
        a.nop(1)
        a("v_add_f32 v96, v96, v97")
        a("v_lshlrev_b32 v13, 6, v2")
        a("v_bfe_u32 v14, v1, 4, 1")
        a("v_lshl_add_u32 v13, v14, 2, v13")
        a("s_lshl_b32 s22, s16, 12")
        a("s_lshl_b32 s23, s3, 10")
        a("s_add_u32 s22, s22, s23")
        a("s_lshl_b32 s23, s17, 3")
        a("s_add_u32 s22, s22, s23")
        a("s_add_u32 s22, s22, 0x%x" % STOUT)
        a("v_cmp_gt_u32 vcc, 32, v1")
        a("s_and_saveexec_b64 s[26:27], vcc")
        a("buffer_store_dword v96, v13, s[4:7], s22 offen")
    else:
        a("v_mul_u32_u24 v12, 144, v1")
        a("s_lshl_b32 s23, s3, 5")
        a("v_add_u32 v12, s23, v12")
        a("ds_write_b128 v12, v[64:67] offset:%d" % OT)
        a("ds_write_b128 v12, v[68:71] offset:%d" % (OT + 16))
        a("s_waitcnt lgkmcnt(0)")
        a("s_barrier")
        a("v_lshrrev_b32 v13, 2, v2")
        a("v_lshl_add_u32 v13, v3, 3, v13")
        a("v_mul_u32_u24 v13, 144, v13")
        a("v_and_b32 v14, 3, v2")
        a("v_lshl_add_u32 v13, v14, 3, v13")
        a("v_add_u32 v13, s23, v13")
        a("ds_read_b64_tr_b16 v[72:73], v13 offset:%d" % OT)
        a("ds_read_b64_tr_b16 v[74:75], v13 offset:%d" % (OT + 576))
        a("ds_read_b64_tr_b16 v[76:77], v13 offset:%d" % (OT + 4608))
        a("ds_read_b64_tr_b16 v[78:79], v13 offset:%d" % (OT + 5184))
        a("s_lshl_b32 s23, s3, 4")
        a("v_add_u32 v14, s23, v2")
        a("v_lshlrev_b32 v14, 10, v14")
        a("v_lshl_add_u32 v14, v3, 4, v14")
        a("s_lshl_b32 s22, s16, 16")
        a("s_lshl_b32 s23, s17, 7")
        a("s_add_u32 s22, s22, s23")
        a("s_waitcnt lgkmcnt(0)")
        a("buffer_store_dwordx4 v[72:75], v14, s[8:11], s22 offen")
        a("buffer_store_dwordx4 v[76:79], v14, s[8:11], s22 offen offset:64")
    a.label("L_%s_end" % name)
    a("s_endpgm")
    return a.text(), kernel_desc(name, 248, agpr=64), RB + 4 * RW
```

```python
from asmlib import *

XT0 = 0x000000
XT1 = 0x200000
XT2 = 0x400000
XT3 = 0x600000
ST0 = 0x800000
ST2 = 0x820000
CS  = 0x840000
KREV = 0x900000
KSTRIDE = 4224
W1F = 0xC00000
W2F = 0xE00000
HB  = 0x1000000
WS_SIZE = 0x2000000
LOG2E = 0x3fb8aa3b
INV2PI = 0x3e22f983
ONES_BF = 0x3f803f80

def common_ids(a):
    a("v_and_b32 v1, 63, v0")
    a("v_lshrrev_b32 v4, 6, v0")
    a("v_and_b32 v2, 15, v0")
    a("v_bfe_u32 v3, v0, 4, 2")
    a("v_readfirstlane_b32 s3, v4")

def gen_prep(name):
    a = Asm()
    a.raw(kernel_header(name))
    a("s_load_dwordx2 s[12:13], s[0:1], 96")
    common_ids(a)
    a("s_cmp_lt_u32 s2, 256"); a("s_cbranch_scc1 L_prep_kg")
    a("s_cmp_lt_u32 s2, 512"); a("s_cbranch_scc1 L_prep_xt")
    a("s_cmp_lt_u32 s2, 568"); a("s_cbranch_scc1 L_prep_w1")
    a("s_cmp_lt_u32 s2, 680"); a("s_cbranch_scc1 L_prep_w2")
    a("s_endpgm")

    a.label("L_prep_xt")
    a("s_load_dwordx2 s[14:15], s[0:1], 0")
    a("s_sub_u32 s16, s2, 256")
    a("s_lshr_b32 s17, s16, 3")
    a("s_and_b32 s18, s16, 7")
    a("s_waitcnt lgkmcnt(0)")
    a.srd(4, 12, WS_SIZE)
    a.srd(8, 14, 0x200000)
    a("v_lshrrev_b32 v5, 3, v0")
    a("v_and_b32 v6, 7, v0")
    a("v_lshlrev_b32 v7, 10, v5")
    a("v_lshl_add_u32 v7, v6, 4, v7")
    a("s_lshl_b32 s19, s17, 16")
    a("s_lshl_b32 s20, s18, 7")
    a("s_add_u32 s19, s19, s20")
    a("s_add_u32 s20, s19, 32768")
    a("buffer_load_dwordx4 v[8:11], v7, s[8:11], s19 offen")
    a("buffer_load_dwordx4 v[12:15], v7, s[8:11], s20 offen")
    a("s_mov_b32 s21, 0x%x" % ONES_BF)
    a("v_mov_b32 v30, s21")
    a("v_mul_u32_u24 v16, 144, v5")
    a("v_lshl_add_u32 v16, v6, 4, v16")
    a("s_waitcnt vmcnt(0)")
    a("ds_write_b128 v16, v[8:11]")
    a("ds_write_b128 v16, v[12:15] offset:4608")
    for (base, d) in ((8, 20), (12, 22)):
        a("v_dot2_f32_bf16 v%d, v%d, v30, 0" % (d, base))
        a("v_dot2_f32_bf16 v%d, v%d, v%d, 0" % (d + 1, base, base))
        for k in range(1, 4):
            a("v_dot2_f32_bf16 v%d, v%d, v30, v%d" % (d, base + k, d))
            a("v_dot2_f32_bf16 v%d, v%d, v%d, v%d" % (d + 1, base + k, base + k, d + 1))
    a.nop(4)
    for mode in ("quad_perm:[1,0,3,2]", "quad_perm:[2,3,0,1]", "row_half_mirror"):
        for d in range(20, 24):
            a("v_add_f32_dpp v%d, v%d, v%d %s row_mask:0xf bank_mask:0xf" % (d, d, d, mode))
        a.nop(2)
    a("v_lshlrev_b32 v17, 6, v5")
    a("s_lshl_b32 s19, s17, 12")
    a("s_lshl_b32 s20, s18, 3")
    a("s_add_u32 s19, s19, s20")
    a("s_add_u32 s19, s19, 0x%x" % ST0)
    a("v_cmp_eq_u32 vcc, 0, v6")
    a("s_and_saveexec_b64 s[22:23], vcc")
    a("buffer_store_dwordx2 v[20:21], v17, s[4:7], s19 offen")
    a("buffer_store_dwordx2 v[22:23], v17, s[4:7], s19 offen offset:2048")
    a("s_mov_b64 exec, s[22:23]")
    a("s_waitcnt lgkmcnt(0)")
    a("s_barrier")
    a("v_lshrrev_b32 v18, 2, v2")
    a("v_lshl_add_u32 v18, v3, 3, v18")
    a("v_mul_u32_u24 v18, 144, v18")
    a("v_and_b32 v19, 3, v2")
    a("v_lshl_add_u32 v18, v19, 3, v18")
    a("s_lshl_b32 s19, s3, 5")
    a("v_add_u32 v18, s19, v18")
    a("ds_read_b64_tr_b16 v[24:25], v18")
    a("ds_read_b64_tr_b16 v[26:27], v18 offset:576")
    a("ds_read_b64_tr_b16 v[32:33], v18 offset:4608")
    a("ds_read_b64_tr_b16 v[34:35], v18 offset:5184")
    a("s_lshl_b32 s19, s3, 4")
    a("v_add_u32 v19, s19, v2")
    a("v_lshlrev_b32 v19, 12, v19")
    a("v_lshl_add_u32 v19, v3, 4, v19")
    a("s_lshl_b32 s19, s18, 18")
    a("s_lshl_b32 s20, s17, 7")
    a("s_add_u32 s19, s19, s20")
    a("s_add_u32 s19, s19, 0x%x" % XT0)
    a("s_waitcnt lgkmcnt(0)")
    a("buffer_store_dwordx4 v[24:27], v19, s[4:7], s19 offen")
    a("buffer_store_dwordx4 v[32:35], v19, s[4:7], s19 offen offset:64")
    a("s_endpgm")

    a.label("L_prep_w1")
    a("s_load_dwordx2 s[14:15], s[0:1], 64")
    a("s_sub_u32 s16, s2, 512")
    a("s_waitcnt lgkmcnt(0)")
    a.srd(4, 12, WS_SIZE)
    a.srd(8, 14, 512 * 1792 * 2)
    a("v_lshrrev_b32 v5, 2, v0")
    a("v_and_b32 v6, 3, v0")
    a("s_movk_i32 s17, 3584")
    a("v_mul_lo_u32 v7, v5, s17")
    a("v_lshl_add_u32 v7, v6, 4, v7")
    a("s_lshl_b32 s18, s16, 6")
    for e in range(8):
        a("buffer_load_dwordx4 v[%d:%d], v7, s[8:11], s18 offen" % (8 + 4 * e, 11 + 4 * e))
        if e < 7:
            a("s_add_u32 s18, s18, %d" % (64 * 3584))
    a("v_mul_u32_u24 v40, 80, v5")
    a("v_lshl_add_u32 v40, v6, 4, v40")
    for e in range(8):
        a("s_waitcnt vmcnt(%d)" % (7 - e))
        a("ds_write_b128 v40, v[%d:%d] offset:%d" % (8 + 4 * e, 11 + 4 * e, e * 5120))
    a("s_waitcnt lgkmcnt(0)")
    a("s_barrier")
    a("v_lshrrev_b32 v41, 2, v2")
    a("v_lshl_add_u32 v41, v3, 2, v41")
    a("v_mul_u32_u24 v41, 80, v41")
    a("v_and_b32 v42, 3, v2")
    a("v_lshl_add_u32 v41, v42, 3, v41")
    a("s_mul_i32 s19, s3, 10240")
    a("v_add_u32 v41, s19, v41")
    for kk in range(4):
        for T in range(2):
            for rho in range(2):
                r = 8 + (kk * 2 + T) * 4 + rho * 2
                a("ds_read_b64_tr_b16 v[%d:%d], v41 offset:%d" % (r, r + 1, kk * 2560 + rho * 1280 + T * 32))
    a("s_mov_b32 s21, 0x%x" % ONES_BF)
    a("v_mov_b32 v43, s21")
    a("v_lshlrev_b32 v44, 4, v1")
    a("s_lshl_b32 s19, s3, 13")
    a("v_add_u32 v44, s19, v44")
    a("s_lshl_b32 s19, s16, 15")
    a("s_add_u32 s19, s19, 0x%x" % W1F)
    a("s_add_u32 s20, s19, 4096")
    a("s_waitcnt lgkmcnt(0)")
    for kk in range(4):
        for T in range(2):
            r = 8 + (kk * 2 + T) * 4
            a("buffer_store_dwordx4 v[%d:%d], v44, s[4:7], s%d offen offset:%d" %
              (r, r + 3, 19 if kk < 2 else 20, (kk % 2) * 2048 + T * 1024))
    for T in range(2):
        first = True
        for kk in range(4):
            r = 8 + (kk * 2 + T) * 4
            for k in range(4):
                a("v_dot2_f32_bf16 v%d, v%d, v43, %s" % (46 + T, r + k, "0" if first else "v%d" % (46 + T)))
                first = False
    a.nop(4)
    a("v_lshlrev_b32 v45, 2, v1")
    a("s_lshl_b32 s19, s3, 9")
    a("v_add_u32 v45, s19, v45")
    a("ds_write_b32 v45, v46 offset:40960")
    a("ds_write_b32 v45, v47 offset:41216")
    a("s_waitcnt lgkmcnt(0)")
    a("s_barrier")
    a("v_cmp_gt_u32 vcc, 32, v0")
    a("s_and_saveexec_b64 s[22:23], vcc")
    a("s_cbranch_execz L_prep_w1_end")
    a("v_bfe_u32 v48, v0, 4, 1")
    a("v_lshlrev_b32 v48, 8, v48")
    a("v_lshl_add_u32 v48, v2, 2, v48")
    for w in range(4):
        for g in range(4):
            a("ds_read_b32 v%d, v48 offset:%d" % (50 + w * 4 + g, 40960 + w * 512 + g * 64))
    a("s_waitcnt lgkmcnt(0)")
    for k in range(1, 16):
        a("v_add_f32 v50, v50, v%d" % (50 + k))
    a("v_lshlrev_b32 v49, 2, v0")
    a("s_lshl_b32 s19, s16, 7")
    a("s_add_u32 s19, s19, 0x%x" % CS)
    a("buffer_store_dword v50, v49, s[4:7], s19 offen")
    a.label("L_prep_w1_end")
    a("s_endpgm")

    a.label("L_prep_w2")
    a("s_load_dwordx2 s[14:15], s[0:1], 72")
    a("s_sub_u32 s16, s2, 568")
    a("s_lshr_b32 s17, s16, 3")
    a("s_and_b32 s18, s16, 7")
    a("s_waitcnt lgkmcnt(0)")
    a.srd(4, 12, WS_SIZE)
    a.srd(8, 14, 512 * 1792 * 2)
    a("v_lshrrev_b32 v5, 3, v0")
    a("v_and_b32 v6, 7, v0")
    a("v_lshlrev_b32 v7, 10, v5")
    a("v_lshl_add_u32 v7, v6, 4, v7")
    a("s_lshl_b32 s19, s17, 17")
    a("s_lshl_b32 s20, s18, 7")
    a("s_add_u32 s19, s19, s20")
    for e in range(4):
        a("buffer_load_dwordx4 v[%d:%d], v7, s[8:11], s19 offen" % (8 + 4 * e, 11 + 4 * e))
        if e < 3:
            a("s_add_u32 s19, s19, 32768")
    a("v_mul_u32_u24 v40, 144, v5")
    a("v_lshl_add_u32 v40, v6, 4, v40")
    for e in range(4):
        a("s_waitcnt vmcnt(%d)" % (3 - e))
        a("ds_write_b128 v40, v[%d:%d] offset:%d" % (8 + 4 * e, 11 + 4 * e, e * 4608))
    a("s_waitcnt lgkmcnt(0)")
    a("s_barrier")
    a("v_lshrrev_b32 v41, 2, v2")
    a("v_lshl_add_u32 v41, v3, 2, v41")
    a("v_mul_u32_u24 v41, 144, v41")
    a("v_and_b32 v42, 3, v2")
    a("v_lshl_add_u32 v41, v42, 3, v41")
    a("s_mul_i32 s19, s3, 4608")
    a("v_add_u32 v41, s19, v41")
    for Dt in range(4):
        for rho in range(2):
            r = 8 + Dt * 4 + rho * 2
            a("ds_read_b64_tr_b16 v[%d:%d], v41 offset:%d" % (r, r + 1, rho * 2304 + Dt * 32))
    a("v_lshlrev_b32 v44, 4, v1")
    a("s_lshl_b32 s19, s3, 12")
    a("v_add_u32 v44, s19, v44")
    a("s_mul_i32 s19, s18, 56")
    a("s_lshl_b32 s20, s17, 2")
    a("s_add_u32 s19, s19, s20")
    a("s_lshl_b32 s19, s19, 12")
    a("s_add_u32 s19, s19, 0x%x" % W2F)
    a("s_waitcnt lgkmcnt(0)")
    for Dt in range(4):
        r = 8 + Dt * 4
        a("buffer_store_dwordx4 v[%d:%d], v44, s[4:7], s19 offen offset:%d" % (r, r + 3, Dt * 1024))
    a("s_endpgm")

    PRM = 0
    BT = 4096
    TB = 4352
    TBS = 9728
    a.label("L_prep_kg")
    a("s_load_dwordx4 s[16:19], s[0:1], 8")
    a("s_load_dwordx4 s[20:23], s[0:1], 24")
    a("s_load_dwordx2 s[24:25], s[0:1], 40")
    a("s_waitcnt lgkmcnt(0)")
    a.srd(4, 12, WS_SIZE)
    a.srd(28, 16, 131072)
    a.srd(32, 18, 131072)
    a.srd(36, 20, 131072)
    a.srd(40, 22, 131072)
    a.srd(44, 24, 1024)
    a("v_lshlrev_b32 v5, 1, v0")
    a("s_lshl_b32 s26, s2, 9")
    a("buffer_load_ushort v8, v5, s[28:31], s26 offen")
    a("buffer_load_ushort v9, v5, s[32:35], s26 offen")
    a("buffer_load_ushort v10, v5, s[36:39], s26 offen")
    a("buffer_load_ushort v11, v5, s[40:43], s26 offen")
    a("v_lshrrev_b32 v6, 7, v0")
    a("v_lshlrev_b32 v6, 1, v6")
    a("s_lshl_b32 s27, s2, 2")
    a("buffer_load_ushort v12, v6, s[44:47], s27 offen")
    a("v_and_b32 v13, 7, v0")
    a("v_lshrrev_b32 v14, 3, v0")
    a("v_lshl_add_u32 v13, v14, 7, v13")
    a("v_and_b32 v14, 3, v0")
    a("v_lshlrev_b32 v14, 1, v14")
    a("v_subrev_u32 v15, 16, v0")
    a("v_lshrrev_b32 v15, 2, v15")
    a("v_lshl_add_u32 v14, v15, 7, v14")
    a("v_add_u32 v14, 0x100, v14")
    a("v_cmp_le_u32 vcc, 16, v0")
    a.nop(2)
    a("v_cndmask_b32 v13, v13, v14, vcc")
    a("v_and_b32 v14, 1, v0")
    a("v_lshlrev_b32 v14, 2, v14")
    a("v_subrev_u32 v15, 24, v0")
    a("v_lshrrev_b32 v15, 1, v15")
    a("v_lshl_add_u32 v14, v15, 7, v14")
    a("v_add_u32 v14, 0x200, v14")
    a("v_cmp_le_u32 vcc, 24, v0")
    a.nop(2)
    a("v_cndmask_b32 v13, v13, v14, vcc")
    a("v_subrev_u32 v15, 32, v0")
    a("v_lshlrev_b32 v14, 7, v15")
    a("v_add_u32 v14, 0x400, v14")
    a("v_cmp_le_u32 vcc, 32, v0")
    a.nop(2)
    a("v_cndmask_b32 v13, v13, v14, vcc")
    a("v_mov_b32 v14, 0x900")
    a("v_cmp_lt_u32 vcc, 40, v0")
    a.nop(2)
    a("v_cndmask_b32 v13, v13, v14, vcc")
    a("v_lshlrev_b32 v14, 2, v0")
    a("v_cmp_gt_u32 vcc, 48, v0")
    a("s_and_saveexec_b64 s[48:49], vcc")
    a("ds_write_b32 v14, v13 offset:%d" % BT)
    a("s_mov_b64 exec, s[48:49]")
    a("s_mov_b32 s26, 0x%x" % LOG2E)
    a("s_mov_b32 s27, 0x%x" % INV2PI)
    a("s_waitcnt vmcnt(0)")
    for r in range(8, 13):
        a("v_lshlrev_b32 v%d, 16, v%d" % (r, r))
    a("v_mul_f32 v12, s26, v12")
    a("v_mul_f32 v8, s26, v8")
    a("v_exp_f32 v12, v12")
    a("v_exp_f32 v8, v8")
    a.nop(1)
    a.bfr(12, 12)
    a.bfr(8, 8)
    a("v_mul_f32 v8, v8, v12")
    a("v_mul_f32 v9, v9, v12")
    a("v_mul_f32 v10, v10, v12")
    a("v_mul_f32 v11, v11, v12")
    a("v_mul_f32 v16, s26, v8")
    a("v_sub_f32 v16, 0, v16")
    a("v_mul_f32 v17, s27, v9")
    a("v_add_f32 v18, v10, v10")
    a("v_add_f32 v19, v11, v11")
    a("v_lshlrev_b32 v14, 4, v0")
    a("ds_write_b128 v14, v[16:19] offset:%d" % PRM)
    a("s_waitcnt lgkmcnt(0)")
    a("s_barrier")
    a("v_lshlrev_b32 v14, 2, v2")
    for t in range(3):
        a("ds_read_b32 v%d, v14 offset:%d" % (20 + t, BT + 64 * t))
    a("v_lshlrev_b32 v23, 3, v2")
    a("v_cvt_f32_u32 v23, v23")
    a("v_lshlrev_b32 v24, 4, v3")
    a("s_lshl_b32 s26, s3, 10")
    a("v_add_u32 v24, s26, v24")
    a("ds_read_b128 v[28:31], v24 offset:%d" % PRM)
    for r in range(64, 76):
        a("v_mov_b32 v%d, 0" % r)
    a("s_waitcnt lgkmcnt(1)")
    for t in range(3):
        a("v_cvt_f32_u32 v%d, v%d" % (20 + t, 20 + t))
    for q in range(16):
        P = 28 + 4 * (q % 2)
        Pn = 28 + 4 * ((q + 1) % 2)
        a("s_waitcnt lgkmcnt(0)")
        if q < 15:
            a("ds_read_b128 v[%d:%d], v24 offset:%d" % (Pn, Pn + 3, PRM + (q + 1) * 64))
        for k in range(4):
            a("v_mul_f32 v%d, v%d, v%d" % (36 + k, P, 20 + k))
            a("v_mul_f32 v%d, v%d, v%d" % (40 + k, P + 1, 20 + k))
        for k in range(4):
            a("v_exp_f32 v%d, v%d" % (36 + k, 36 + k))
            a("v_fract_f32 v%d, v%d" % (40 + k, 40 + k))
        for k in range(4):
            a("v_sin_f32 v%d, v%d" % (44 + k, 40 + k))
            a("v_cos_f32 v%d, v%d" % (48 + k, 40 + k))
        a.nop(1)
        for k in range(4):
            a("v_mul_f32 v%d, v%d, v%d" % (44 + k, 36 + k, 44 + k))
            a("v_mul_f32 v%d, v%d, v%d" % (48 + k, 36 + k, 48 + k))
        for t in range(3):
            a("v_mul_f32 v%d, v%d, v%d" % (52 + t, P + 3, 44 + t))
            a("v_mul_f32 v%d, v%d, v%d" % (56 + t, P + 3, 48 + t))
        for t in range(3):
            a("v_fma_f32 v%d, v%d, v%d, -v%d" % (52 + t, P + 2, 48 + t, 52 + t))
            a("v_fma_f32 v%d, -v%d, v%d, -v%d" % (56 + t, P + 2, 44 + t, 56 + t))
        a.nop(2)
        for t in range(3):
            a("v_mfma_f32_16x16x4_f32 v[%d:%d], v%d, v51, v[%d:%d]" % (64 + 4 * t, 67 + 4 * t, 52 + t, 64 + 4 * t, 67 + 4 * t))
        for t in range(3):
            a("v_mfma_f32_16x16x4_f32 v[%d:%d], v%d, v47, v[%d:%d]" % (64 + 4 * t, 67 + 4 * t, 56 + t, 64 + 4 * t, 67 + 4 * t))
    a("v_lshlrev_b32 v14, 4, v3")
    for t in range(3):
        a("ds_read_b128 v[%d:%d], v14 offset:%d" % (80 + 4 * t, 83 + 4 * t, BT + 64 * t))
    a("v_lshlrev_b32 v15, 5, v2")
    a("s_lshr_b32 s26, s3, 1")
    a("s_mul_i32 s26, s26, %d" % TBS)
    a("s_add_u32 s26, s26, %d" % TB)
    a("v_add_u32 v15, s26, v15")
    a("s_waitcnt lgkmcnt(0)")
    for k in range(12):
        a("v_lshl_add_u32 v%d, v%d, 2, v15" % (80 + k, 80 + k))
    a.nop(12)
    a("s_and_b32 s27, s3, 1")
    a("s_cmp_eq_u32 s27, 0")
    a("s_cbranch_scc1 L_prep_kg_a")
    for k in range(12):
        a("ds_write_b32 v%d, v%d" % (80 + k, 64 + k))
    a("s_waitcnt lgkmcnt(0)")
    a("s_barrier")
    a("s_barrier")
    a("s_branch L_prep_kg_b")
    a.label("L_prep_kg_a")
    a("s_barrier")
    for k in range(12):
        a("ds_read_b32 v%d, v%d" % (96 + k, 80 + k))
    a("s_waitcnt lgkmcnt(0)")
    for k in range(12):
        a("v_add_f32 v%d, v%d, v%d" % (96 + k, 96 + k, 64 + k))
    for k in range(12):
        a("ds_write_b32 v%d, v%d" % (80 + k, 96 + k))
    a("s_waitcnt lgkmcnt(0)")
    a("s_barrier")
    a.label("L_prep_kg_b")
    a("v_and_b32 v5, 127, v0")
    a("v_lshlrev_b32 v6, 4, v5")
    a("v_sub_u32 v6, 0x7ff, v6")
    a("v_lshrrev_b32 v7, 7, v0")
    a("s_movk_i32 s26, %d" % TBS)
    a("v_mul_lo_u32 v7, v7, s26")
    a("v_add_u32 v7, %d, v7" % TB)
    for k in range(16):
        a("v_subrev_u32 v%d, %d, v6" % (16 + k, k))
        a("v_cvt_f32_u32 v%d, v%d" % (16 + k, 16 + k))
    for k in range(16):
        a.bfr(16 + k, 16 + k)
    for k in range(16):
        a("v_cvt_u32_f32 v%d, v%d" % (16 + k, 16 + k))
        a("v_lshl_add_u32 v%d, v%d, 2, v7" % (16 + k, 16 + k))
    for k in range(16):
        a("ds_read_b32 v%d, v%d" % (32 + k, 16 + k))
    a("s_waitcnt lgkmcnt(0)")
    for k in range(8):
        a("v_cvt_pk_bf16_f32 v%d, v%d, v%d" % (48 + k, 32 + 2 * k, 33 + 2 * k))
    a("v_lshrrev_b32 v7, 7, v0")
    a("s_movk_i32 s26, %d" % KSTRIDE)
    a("v_mul_lo_u32 v7, v7, s26")
    a("v_lshl_add_u32 v8, v5, 5, v7")
    a("s_mul_i32 s26, s2, %d" % (2 * KSTRIDE))
    a("s_add_u32 s26, s26, 0x%x" % KREV)
    a("buffer_store_dwordx4 v[48:51], v8, s[4:7], s26 offen")
    a("buffer_store_dwordx4 v[52:55], v8, s[4:7], s26 offen offset:16")
    for k in range(4):
        a("v_mov_b32 v%d, 0" % (56 + k))
    a("v_lshl_add_u32 v8, v5, 4, v7")
    a("v_cmp_gt_u32 vcc, 8, v5")
    a("s_and_saveexec_b64 s[48:49], vcc")
    a("s_cbranch_execz L_prep_kg_end")
    a("s_add_u32 s26, s26, 4096")
    a("buffer_store_dwordx4 v[56:59], v8, s[4:7], s26 offen")
    a.label("L_prep_kg_end")
    a("s_endpgm")
    return a.text(), kernel_desc(name, 128)
```

```python
import sys
from asmlib import *
from gen_prep import *
from gen_conv import *
from gen_gemm import *

def build():
    ks = []
    t, d = gen_prep("prep_kernel"); ks.append(("prep_kernel", t, d, 680, 49152))
    t, d, l = gen_conv("conv1_kernel", XT0, XT1, ST0); ks.append(("conv1_kernel", t, d, 256, l))
    t, d, l = gen_gemm1("g1a_kernel", XT1); ks.append(("g1a_kernel", t, d, 224, l))
    t, d, l = gen_gemm2("g2a_kernel", XT1, XT2, ST2, False); ks.append(("g2a_kernel", t, d, 256, l))
    t, d, l = gen_conv("conv2_kernel", XT2, XT3, ST2); ks.append(("conv2_kernel", t, d, 256, l))
    t, d, l = gen_gemm1("g1b_kernel", XT3); ks.append(("g1b_kernel", t, d, 224, l))
    t, d, l = gen_gemm2("g2b_kernel", XT3, 0, 0, True); ks.append(("g2b_kernel", t, d, 256, l))
    out = []
    for (n, t, d, g, l) in ks:
        out.append("; @launch kernel=%s grid=(%d,1,1) block=(256,1,1) lds=%d" % (n, g, l))
    out.append('.amdgcn_target "amdgcn-amd-amdhsa--gfx950"')
    out.append(".text")
    for (n, t, d, g, l) in ks:
        out.append(t)
    out.append('.section .rodata,"a"')
    for (n, t, d, g, l) in ks:
        out.append(d)
    return "\n".join(out)

if __name__ == "__main__":
    path = sys.argv[1] if len(sys.argv) > 1 else "interleave_layers__ssm_conv_s4d__dense_activation_relu__prompt.s"
    open(path, "w").write(build())
    print("wrote", path)
```

```python
class Asm:
    def __init__(self):
        self.lines = []
        self.vm = 0
        self.lg = 0
        self.uid = 0
    def __call__(self, s):
        self.lines.append("    " + s)
    def raw(self, s):
        self.lines.append(s)
    def label(self, l):
        self.lines.append(l + ":")
    def newlabel(self, base):
        self.uid += 1
        return "L_%s_%d" % (base, self.uid)
    def comment(self, s):
        self.lines.append("    ; " + s)
    def vmem(self, s):
        self(s); self.vm += 1; return self.vm - 1
    def lds(self, s):
        self(s); self.lg += 1; return self.lg - 1
    def wait_vm(self, idx):
        n = self.vm - idx - 1
        assert 0 <= n <= 63, n
        self("s_waitcnt vmcnt(%d)" % n)
    def wait_lg(self, idx):
        n = self.lg - idx - 1
        assert 0 <= n, n
        n = min(n, 15)
        self("s_waitcnt lgkmcnt(%d)" % n)
    def wait_all(self):
        self("s_waitcnt vmcnt(0) lgkmcnt(0)")
    def nop(self, n):
        while n > 0:
            k = min(n, 16)
            self("s_nop %d" % (k - 1))
            n -= k
    def srd(self, d, b, size):
        self("s_mov_b32 s%d, s%d" % (d, b))
        self("s_and_b32 s%d, s%d, 0xffff" % (d + 1, b + 1))
        self("s_mov_b32 s%d, 0x%x" % (d + 2, size))
        self("s_mov_b32 s%d, 0x00020000" % (d + 3))
    def bfr(self, d, s):
        self("v_cvt_pk_bf16_f32 v%d, v%d, v%d" % (d, s, s))
        self("v_lshlrev_b32 v%d, 16, v%d" % (d, d))
    STAMPS = False
    def stamp(self):
        if not Asm.STAMPS: return
        k = getattr(self, "nst", 0); self.nst = k + 1
        self("s_memtime s[%d:%d]" % (64 + 2 * k, 65 + 2 * k))
        self("s_waitcnt lgkmcnt(0)")
    def stamp_flush(self, slot):
        if not Asm.STAMPS: return
        self.stamp()
        n = self.nst
        self("s_memrealtime s[90:91]")
        self("s_waitcnt lgkmcnt(0)")
        self("s_mov_b64 exec, -1")
        self("s_lshl_b32 s92, s2, 2")
        self("s_and_b32 s93, s3, 3")
        self("s_add_u32 s92, s92, s93")
        self("s_lshl_b32 s92, s92, 6")
        self("s_add_u32 s92, s92, 0x%x" % (0x1800000 + slot * 0x40000))
        self("v_mov_b32 v0, 0")
        for k in range(n):
            self("v_mov_b32 v1, s%d" % (64 + 2 * k))
            self("buffer_store_dword v1, v0, s[4:7], s92 offen offset:%d" % (4 * k))
        self("v_mov_b32 v1, s90")
        self("buffer_store_dword v1, v0, s[4:7], s92 offen offset:60")
    def text(self):
        return "\n".join(self.lines) + "\n"

def vr(a, n=None):
    if n is None or n == 1:
        return "v%d" % a
    return "v[%d:%d]" % (a, a + n - 1)
def ar(a, n=None):
    if n is None or n == 1:
        return "a%d" % a
    return "a[%d:%d]" % (a, a + n - 1)
def sr(a, n=None):
    if n is None or n == 1:
        return "s%d" % a
    return "s[%d:%d]" % (a, a + n - 1)

def kernel_header(name):
    return """.globl %s
.p2align 8
.type %s,@function
%s:
""" % (name, name, name)

def kernel_desc(name, vgpr, agpr=0, sgpr=96):
    acc = (vgpr + 3) // 4 * 4
    nfv = acc + agpr if agpr else vgpr
    return """.p2align 6
.amdhsa_kernel %s
  .amdhsa_next_free_vgpr %d
  .amdhsa_next_free_sgpr %d
  .amdhsa_accum_offset %d
  .amdhsa_group_segment_fixed_size 0
  .amdhsa_kernarg_size 104
  .amdhsa_user_sgpr_count 2
  .amdhsa_user_sgpr_kernarg_segment_ptr 1
  .amdhsa_system_sgpr_workgroup_id_x 1
  .amdhsa_float_denorm_mode_32 3
.end_amdhsa_kernel
""" % (name, nfv, sgpr, acc)
```

```python
from asmlib import *
from gen_prep import *

EPS = 0x3727c5ac

def emit_ln_scalars(a, S, Q, M, RS, SB, t0):
    a("v_mul_f32 v%d, 0x3b000000, v%d" % (S, S))
    a("v_mul_f32 v%d, 0x3b000000, v%d" % (Q, Q))
    a("v_fma_f32 v%d, -v%d, v%d, v%d" % (Q, S, S, Q))
    a("v_max_f32 v%d, 0, v%d" % (Q, Q))
    a.bfr(M, S)
    a.bfr(Q, Q)
    a("v_add_f32 v%d, 0x%x, v%d" % (Q, EPS, Q))
    a.bfr(Q, Q)
    a("v_sqrt_f32 v%d, v%d" % (Q, Q))
    a.nop(1)
    a.bfr(SB, Q)
    a("v_rcp_f32 v%d, v%d" % (RS, SB))

def emit_ln_scalars_multi(a, items):
    for (S, Q, M, RS, SB) in items:
        a("v_mul_f32 v%d, 0x3b000000, v%d" % (S, S))
        a("v_mul_f32 v%d, 0x3b000000, v%d" % (Q, Q))
    for (S, Q, M, RS, SB) in items:
        a("v_fma_f32 v%d, -v%d, v%d, v%d" % (Q, S, S, Q))
    for (S, Q, M, RS, SB) in items:
        a("v_max_f32 v%d, 0, v%d" % (Q, Q))
    for (S, Q, M, RS, SB) in items:
        a("v_cvt_pk_bf16_f32 v%d, v%d, v%d" % (Q, Q, S))
    for (S, Q, M, RS, SB) in items:
        a("v_and_b32 v%d, 0xffff0000, v%d" % (M, Q))
        a("v_lshlrev_b32 v%d, 16, v%d" % (Q, Q))
    for (S, Q, M, RS, SB) in items:
        a("v_add_f32 v%d, 0x%x, v%d" % (Q, EPS, Q))
    for (S, Q, M, RS, SB) in items:
        a("v_cvt_pk_bf16_f32 v%d, v%d, v%d" % (Q, Q, Q))
    for (S, Q, M, RS, SB) in items:
        a("v_lshlrev_b32 v%d, 16, v%d" % (Q, Q))
    for (S, Q, M, RS, SB) in items:
        a("v_sqrt_f32 v%d, v%d" % (Q, Q))
    a.nop(1)
    for (S, Q, M, RS, SB) in items:
        a("v_cvt_pk_bf16_f32 v%d, v%d, v%d" % (SB, Q, Q))
    for (S, Q, M, RS, SB) in items:
        a("v_lshlrev_b32 v%d, 16, v%d" % (SB, SB))
    for (S, Q, M, RS, SB) in items:
        a("v_rcp_f32 v%d, v%d" % (RS, SB))
    a.nop(1)

def gen_conv(name, XIN, XOUT, ST, slot=0):
    a = Asm()
    a.raw(kernel_header(name))
    UB = 512; US = 4608
    XS = 9728; XSS = 4096
    SCR = 17920
    KC = 34304; CSTR = 4256; KCS = 8 * CSTR
    a("s_cmp_ge_u32 s2, 256")
    a("s_cbranch_scc1 L_%s_end" % name)
    a("s_load_dwordx2 s[12:13], s[0:1], 96")
    a("s_load_dwordx2 s[14:15], s[0:1], 48")
    common_ids(a)
    a("s_waitcnt lgkmcnt(0)")
    a.srd(4, 12, WS_SIZE)
    a.srd(8, 14, 1024)
    a.stamp()
    a("v_lshlrev_b32 v5, 6, v0")
    a("v_lshlrev_b32 v6, 4, v0")
    a("s_mov_b32 s16, 0x%x" % ST)
    ist = []
    for k in range(4):
        ist.append(a.vmem("buffer_load_dwordx4 v[%d:%d], v5, s[4:7], s16 offen offset:%d" % (64 + 4 * k, 67 + 4 * k, 16 * k)))
    a("s_mul_i32 s17, s2, %d" % (2 * XTS))
    a("s_add_u32 s18, s17, 0x%x" % XIN)
    a("s_add_u32 s19, s18, %d" % XTS)
    ix0 = a.vmem("buffer_load_dwordx4 v[32:35], v6, s[4:7], s18 offen")
    ix1 = a.vmem("buffer_load_dwordx4 v[36:39], v6, s[4:7], s19 offen")
    a("s_mul_i32 s20, s2, %d" % (2 * KSTRIDE))
    a("s_add_u32 s20, s20, 0x%x" % KREV)
    a("s_add_u32 s21, s20, %d" % KSTRIDE)
    a.vmem("buffer_load_dwordx4 v[40:43], v6, s[4:7], s20 offen")
    ik0 = a.vmem("buffer_load_dwordx4 v[44:47], v6, s[4:7], s20 offen offset:16")
    a.vmem("buffer_load_dwordx4 v[48:51], v6, s[4:7], s21 offen")
    ik1 = a.vmem("buffer_load_dwordx4 v[52:55], v6, s[4:7], s21 offen offset:16")
    a("s_lshl_b32 s22, s2, 2")
    a("v_mov_b32 v8, 0")
    idk = a.vmem("buffer_load_dword v56, v8, s[8:11], s22 offen")
    for k in range(4):
        a("v_mov_b32 v%d, 0" % (12 + k))
    a("v_mul_u32_u24 v7, %d, v0" % CSTR)
    a("v_cmp_gt_u32 vcc, 32, v0")
    a("s_and_saveexec_b64 s[24:25], vcc")
    a("ds_write_b128 v6, v[12:15] offset:%d" % UB)
    a("ds_write_b128 v6, v[12:15] offset:%d" % (UB + US))
    a("v_cmp_gt_u32 vcc, 16, v0")
    a("s_and_b64 exec, exec, vcc")
    a("ds_write_b128 v7, v[12:15] offset:%d" % (KC + 4096))
    a("s_mov_b64 exec, s[24:25]")
    a.wait_vm(ist[3])
    emit_ln_scalars_multi(a, [(64 + 2 * l, 65 + 2 * l, 200 + l, 208 + l, 216 + l) for l in range(8)])
    a.stamp()
    a.wait_vm(ix1)
    a("ds_write_b128 v6, v[32:35] offset:%d" % XS)
    a("ds_write_b128 v6, v[36:39] offset:%d" % (XS + XSS))
    for ch in range(2):
        xb = 32 + 4 * ch
        T = 16 + 0; Qr = 24
        for l in range(8):
            src = xb + l // 2
            d = T + l
            if l % 2 == 0:
                a("v_lshlrev_b32 v%d, 16, v%d" % (d, src))
            else:
                a("v_and_b32 v%d, 0xffff0000, v%d" % (d, src))
        for l in range(8):
            a("v_sub_f32 v%d, v%d, v%d" % (T + l, T + l, 200 + l))
        for k in range(4):
            a("v_cvt_pk_bf16_f32 v%d, v%d, v%d" % (Qr + k, T + 2 * k, T + 2 * k + 1))
        for l in range(8):
            if l % 2 == 0:
                a("v_lshlrev_b32 v%d, 16, v%d" % (T + l, Qr + l // 2))
            else:
                a("v_and_b32 v%d, 0xffff0000, v%d" % (T + l, Qr + l // 2))
        for l in range(8):
            a("v_mul_f32 v%d, v%d, v%d" % (Qr + l, T + l, 208 + l))
        for l in range(8):
            a("v_fma_f32 v%d, -v%d, v%d, v%d" % (T + l, Qr + l, 216 + l, T + l))
        for l in range(8):
            a("v_fma_f32 v%d, v%d, v%d, v%d" % (Qr + l, T + l, 208 + l, Qr + l))
        for k in range(4):
            a("v_cvt_pk_bf16_f32 v%d, v%d, v%d" % (12 + k, Qr + 2 * k, Qr + 2 * k + 1))
        a("ds_write_b128 v6, v[12:15] offset:%d" % (UB + ch * US + 512))
    a("v_add_u32 v7, %d, v6" % KC)
    for ch in range(2):
        kb = 40 + 8 * ch
        a.wait_vm(ik0 if ch == 0 else ik1)
        if ch == 1:
            a("v_add_u32 v7, %d, v7" % KCS)
        for s in range(8):
            o = s // 2
            if s in (0, 4):
                a("ds_write_b128 v7, v[%d:%d] offset:%d" % (kb + o, kb + o + 3, s * CSTR))
            else:
                t = 80 + 4 * s
                for k in range(4):
                    if s % 2 == 0:
                        a("v_mov_b32 v%d, v%d" % (t + k, kb + o + k))
                    else:
                        a("v_alignbit_b32 v%d, v%d, v%d, 16" % (t + k, kb + o + k + 1, kb + o + k))
                a("ds_write_b128 v7, v[%d:%d] offset:%d" % (t, t + 3, s * CSTR))
    a("s_lshr_b32 s26, s3, 1")
    a("s_and_b32 s27, s3, 1")
    a("s_lshl_b32 s29, s27, 8")
    a("v_and_b32 v9, 7, v2")
    a("v_sub_u32 v9, 7, v9")
    a("v_mul_u32_u24 v9, %d, v9" % CSTR)
    a("v_lshrrev_b32 v10, 3, v2")
    a("v_sub_u32 v10, v3, v10")
    a("v_lshl_add_u32 v9, v10, 4, v9")
    a("s_mul_i32 s28, s26, %d" % KCS)
    a("s_add_u32 s28, s28, %d" % (KC + 16 + 256))
    a("s_sub_u32 s28, s28, s29")
    a("v_add_u32 v9, s28, v9")
    a("v_lshlrev_b32 v10, 5, v2")
    a("v_lshl_add_u32 v10, v3, 4, v10")
    a("s_mul_i32 s28, s26, %d" % US)
    a("s_add_u32 s28, s28, %d" % (UB + 32))
    a("s_sub_u32 s28, s28, s29")
    a("v_add_u32 v10, s28, v10")
    ACC = 64
    for r in range(32):
        a("v_accvgpr_write_b32 a%d, 0" % r)
    a("s_waitcnt lgkmcnt(0)")
    a.stamp()
    a("s_barrier")
    a.stamp()
    a.lg = 0
    AF = [96, 160]; BF = [128, 192]
    def issue_parts(e):
        buf = e % 2
        parts = []
        for k in range(8):
            parts.append(lambda k=k: a.lds("ds_read_b128 v[%d:%d], v10 offset:%d" % (BF[buf] + 4 * k, BF[buf] + 4 * k + 3, 512 * k + 32 * (14 - 2 * e))))
            parts.append(lambda k=k: a.lds("ds_read_b128 v[%d:%d], v9 offset:%d" % (AF[buf] + 4 * k, AF[buf] + 4 * k + 3, 512 * (7 - k) + 64 * (3 - e))))
        return parts
    for f in issue_parts(0): f()
    for e in range(4):
        buf = e % 2
        a("s_waitcnt lgkmcnt(0)")
        parts = issue_parts(e + 1) if e < 3 else []
        k = 0
        for c1 in range(8):
            for J in range(c1, 8):
                a("v_mfma_f32_16x16x32_bf16 a[%d:%d], v[%d:%d], v[%d:%d], a[%d:%d]" % (
                    4 * J, 4 * J + 3, AF[buf] + 4 * c1, AF[buf] + 4 * c1 + 3,
                    BF[buf] + 4 * (J - c1), BF[buf] + 4 * (J - c1) + 3, 4 * J, 4 * J + 3))
                k += 1
                if k % 2 == 0 and parts: parts.pop(0)()
        assert not parts
    a.stamp()
    a("v_lshlrev_b32 v11, 4, v1")
    a("s_lshl_b32 s28, s3, 12")
    a("v_add_u32 v12, s28, v11")
    a("s_xor_b32 s28, s3, 1")
    a("s_lshl_b32 s28, s28, 12")
    a("v_add_u32 v13, s28, v11")
    a("v_lshlrev_b32 v14, 5, v2")
    a("v_lshl_add_u32 v14, v3, 3, v14")
    a("s_lshl_b32 s28, s27, 11")
    a("v_add_u32 v14, s28, v14")
    a("s_mul_i32 s28, s26, %d" % US)
    a("v_add_u32 v15, s28, v14")
    a("s_lshl_b32 s28, s26, 12")
    a("v_add_u32 v16, s28, v14")
    a("s_mul_i32 s28, s26, %d" % XTS)
    a("v_add_u32 v17, s28, v14")
    for Jl in range(4):
        a("ds_read_b64 v[%d:%d], v15 offset:%d" % (32 + 2 * Jl, 33 + 2 * Jl, UB + 512 + 512 * Jl))
        a("ds_read_b64 v[%d:%d], v16 offset:%d" % (40 + 2 * Jl, 41 + 2 * Jl, XS + 512 * Jl))
    a("s_cmp_eq_u32 s27, 0")
    a("s_cbranch_scc1 L_%s_h0" % name)
    for Jl in range(4):
        a("ds_write_b128 v12, a[%d:%d] offset:%d" % (4 * Jl, 4 * Jl + 3, SCR + 1024 * Jl))
    for r in range(16):
        a("v_accvgpr_read_b32 v%d, a%d" % (ACC + r, 16 + r))
    a("s_branch L_%s_h1" % name)
    a.label("L_%s_h0" % name)
    for Jl in range(4):
        a("ds_write_b128 v12, a[%d:%d] offset:%d" % (16 + 4 * Jl, 16 + 4 * Jl + 3, SCR + 1024 * Jl))
    for r in range(16):
        a("v_accvgpr_read_b32 v%d, a%d" % (ACC + r, r))
    a.label("L_%s_h1" % name)
    a("s_waitcnt lgkmcnt(0)")
    a("s_barrier")
    for Jl in range(4):
        a("ds_read_b128 v[%d:%d], v13 offset:%d" % (96 + 4 * Jl, 99 + 4 * Jl, SCR + 1024 * Jl))
    a("s_waitcnt vmcnt(0)")
    a("v_lshlrev_b32 v57, 16, v56")
    a("v_and_b32 v58, 0xffff0000, v56")
    a("s_cmp_eq_u32 s26, 0")
    a("s_cbranch_scc1 L_%s_c0" % name)
    a("v_mov_b32 v57, v58")
    a.label("L_%s_c0" % name)
    a("s_waitcnt lgkmcnt(0)")
    a("s_add_u32 s18, s17, 0x%x" % XOUT)
    for Jl in range(4):
        for i in range(4):
            y = ACC + 4 * Jl + i
            a("v_add_f32 v%d, v%d, v%d" % (y, y, 96 + 4 * Jl + i))
            us = 32 + 2 * Jl + i // 2
            xs = 40 + 2 * Jl + i // 2
            if i % 2 == 0:
                a("v_lshlrev_b32 v%d, 16, v%d" % (20 + i, us))
                a("v_lshlrev_b32 v%d, 16, v%d" % (24 + i, xs))
            else:
                a("v_and_b32 v%d, 0xffff0000, v%d" % (20 + i, us))
                a("v_and_b32 v%d, 0xffff0000, v%d" % (24 + i, xs))
            a("v_mul_f32 v%d, v%d, v57" % (20 + i, 20 + i))
        for i in range(4):
            a.bfr(ACC + 4 * Jl + i, ACC + 4 * Jl + i)
            a.bfr(20 + i, 20 + i)
        for i in range(4):
            a("v_add_f32 v%d, v%d, v%d" % (20 + i, 20 + i, ACC + 4 * Jl + i))
        for i in range(4):
            a.bfr(20 + i, 20 + i)
        for i in range(4):
            a("v_add_f32 v%d, v%d, v%d" % (20 + i, 20 + i, 24 + i))
        a("v_cvt_pk_bf16_f32 v%d, v20, v21" % (48 + 2 * Jl))
        a("v_cvt_pk_bf16_f32 v%d, v22, v23" % (49 + 2 * Jl))
        a("buffer_store_dwordx2 v[%d:%d], v17, s[4:7], s18 offen offset:%d" % (48 + 2 * Jl, 49 + 2 * Jl, 512 * Jl))
    a.stamp_flush(slot)
    a.label("L_%s_end" % name)
    a("s_endpgm")
    return a.text(), kernel_desc(name, 224, agpr=32), KC + 2 * KCS
```

```python
from asmlib import *
from gen_prep import *
from gen_conv import emit_ln_scalars, emit_ln_scalars_multi

def gen_gemm1(name, XIN, slot=1):
    a = Asm()
    a.raw(kernel_header(name))
    STL = 131072
    a("s_cmp_ge_u32 s2, 224")
    a("s_cbranch_scc1 L_%s_end" % name)
    a("s_load_dwordx2 s[12:13], s[0:1], 96")
    common_ids(a)
    a("s_and_b32 s16, s2, 7")
    a("s_lshl_b32 s16, s16, 1")
    a("s_bfe_u32 s17, s2, 0x10003")
    a("s_add_u32 s16, s16, s17")
    a("s_lshr_b32 s17, s2, 4")
    a("s_waitcnt lgkmcnt(0)")
    a.srd(4, 12, WS_SIZE)
    a.stamp()
    for e in range(2):
        a("v_add_u32 v7, %d, v3" % (4 * e))
        a("v_lshlrev_b32 v8, 1, v7")
        a("v_xor_b32 v8, v8, v2")
        a("v_lshlrev_b32 v8, 4, v8")
        a("v_mul_u32_u24 v7, %d, v7" % XTS)
        a("v_add_u32 v%d, v7, v8" % (5 + e))
    a("s_mul_i32 s18, s3, %d" % (8 * XTS))
    a("s_lshl_b32 s19, s16, 8")
    a("s_add_u32 s18, s18, s19")
    a("s_add_u32 s18, s18, 0x%x" % XIN)
    a("s_lshl_b32 s20, s3, 11")
    a("v_lshlrev_b32 v9, 4, v1")
    a("s_lshl_b32 s21, s17, 2")
    a("s_add_u32 s21, s21, s3")
    a("s_mov_b32 s24, s21")
    a("s_lshl_b32 s21, s21, 15")
    a("s_add_u32 s21, s21, 0x%x" % W1F)
    a("v_lshlrev_b32 v10, 4, v3")
    a("s_lshl_b32 s22, s24, 7")
    a("s_add_u32 s22, s22, 0x%x" % CS)
    CSR = 240
    a.vmem("buffer_load_dwordx4 v[%d:%d], v10, s[4:7], s22 offen" % (CSR, CSR + 3))
    a.vmem("buffer_load_dwordx4 v[%d:%d], v10, s[4:7], s22 offen offset:64" % (CSR + 4, CSR + 7))
    LOOK = 4
    WR = 168
    NW = 5
    last = {}
    def issue_parts(ks):
        def dma(e):
            def f():
                a("s_add_u32 s23, s20, %d" % (ks * 8192 + e * 1024))
                a("s_mov_b32 m0, s23")
                a.nop(1)
                a.vmem("buffer_load_dwordx4 v%d, s[4:7], s18 offen lds" % (5 + e))
                if e == 1:
                    a("s_add_u32 s18, s18, %d" % (32 * XTS))
            return f
        w = WR + (ks % NW) * 8
        def w0():
            a.vmem("buffer_load_dwordx4 v[%d:%d], v9, s[4:7], s21 offen" % (w, w + 3))
        def w1():
            last[ks] = a.vmem("buffer_load_dwordx4 v[%d:%d], v9, s[4:7], s21 offen offset:1024" % (w + 4, w + 7))
            a("s_add_u32 s21, s21, 2048")
        return [dma(0), dma(1), w0, w1]
    def issue(ks):
        for f in issue_parts(ks): f()
    for ks in range(LOOK):
        issue(ks)
    a("v_lshrrev_b32 v20, 2, v2")
    a("v_and_b32 v21, 3, v2")
    a("v_lshl_add_u32 v22, v3, 2, v20")
    a("v_and_b32 v23, 7, v22")
    a("v_lshlrev_b32 v22, 8, v22")
    a("v_and_b32 v24, 1, v21")
    a("v_lshl_add_u32 v22, v24, 3, v22")
    a("v_lshrrev_b32 v24, 1, v21")
    for lam in range(8):
        a("v_xor_b32 v25, %d, v23" % lam)
        a("v_lshl_add_u32 v25, v25, 1, v24")
        a("v_lshl_add_u32 v%d, v25, 4, v22" % (12 + lam))
    for h in range(2):
        a("s_lshl_b32 s25, s3, 1")
        a("s_add_u32 s25, s25, %d" % h)
        a("v_xor_b32 v25, s25, v23")
        a("v_lshl_add_u32 v25, v25, 1, v24")
        a("v_lshl_add_u32 v%d, v25, 4, v22" % (26 + h))
    BF = [96, 128]
    SF = [208, 216]
    for r in range(80):
        a("v_accvgpr_write_b32 a%d, 0" % r)
    a("s_mov_b32 s25, 0x%x" % ONES_BF)
    for r in range(4):
        a("v_mov_b32 v%d, s25" % (160 + r))
    def rd_parts(ks):
        buf = ks % 2
        parts = []
        if ks == 8:
            def bump():
                for lam in range(8):
                    a("v_add_u32 v%d, 0x10000, v%d" % (12 + lam, 12 + lam))
                for h in range(2):
                    a("v_add_u32 v%d, 0x10000, v%d" % (26 + h, 26 + h))
            parts.append(bump)
        for lam in range(8):
            for rho in range(2):
                r = BF[buf] + 4 * lam + 2 * rho
                parts.append(lambda r=r, lam=lam, rho=rho: a.lds("ds_read_b64_tr_b16 v[%d:%d], v%d offset:%d" % (r, r + 1, 12 + lam, (ks % 8) * 8192 + rho * 4096)))
        for h in range(2):
            for rho in range(2):
                r = SF[buf] + 4 * h + 2 * rho
                parts.append(lambda r=r, h=h, rho=rho: a.lds("ds_read_b64_tr_b16 v[%d:%d], v%d offset:%d" % (r, r + 1, 26 + h, (ks % 8) * 8192 + rho * 4096)))
        return parts
    a.stamp()
    a.wait_vm(last[0])
    a("s_barrier")
    a.stamp()
    for f in rd_parts(0): f()
    for ks in range(16):
        buf = ks % 2
        a("s_waitcnt lgkmcnt(0)")
        rparts = []
        if ks + 1 < 16:
            a.wait_vm(last[ks + 1])
            a("s_barrier")
            rparts = rd_parts(ks + 1)
        parts = issue_parts(ks + LOOK) if ks + LOOK < 16 else []
        w = WR + (ks % NW) * 8
        mf = []
        for lam in range(8):
            for T in range(2):
                c = (T * 8 + lam) * 4
                mf.append("v_mfma_f32_16x16x32_bf16 a[%d:%d], v[%d:%d], v[%d:%d], a[%d:%d]" % (
                    c, c + 3, w + 4 * T, w + 4 * T + 3, BF[buf] + 4 * lam, BF[buf] + 4 * lam + 3, c, c + 3))
        for h in range(2):
            b = SF[buf] + 4 * h
            mf.append("v_mfma_f32_16x16x32_bf16 a[%d:%d], v[160:163], v[%d:%d], a[%d:%d]" % (64 + 4 * h, 67 + 4 * h, b, b + 3, 64 + 4 * h, 67 + 4 * h))
            mf.append("v_mfma_f32_16x16x32_bf16 a[%d:%d], v[%d:%d], v[%d:%d], a[%d:%d]" % (72 + 4 * h, 75 + 4 * h, b, b + 3, b, b + 3, 72 + 4 * h, 75 + 4 * h))
        for k, m in enumerate(mf):
            a(m)
            if rparts: rparts.pop(0)()
            if k >= 16 and rparts: rparts.pop(0)()
            if k % 4 == 1 and parts: parts.pop(0)()
        while rparts: rparts.pop(0)()
        assert not parts
    a.stamp()
    a.nop(8)
    a("v_and_b32 v20, 3, v2")
    for h in range(2):
        a("v_accvgpr_read_b32 v%d, a%d" % (164 + 2 * h, 64 + 4 * h))
        a("v_accvgpr_read_b32 v%d, a%d" % (165 + 2 * h, 72 + 4 * h))
        for i in range(1, 4):
            a("v_accvgpr_read_b32 v21, a%d" % (72 + 4 * h + i))
            a("v_cmp_eq_u32 vcc, %d, v20" % i)
            a.nop(2)
            a("v_cndmask_b32 v%d, v%d, v21, vcc" % (165 + 2 * h, 165 + 2 * h))
    emit_ln_scalars_multi(a, [(164 + 2 * h, 165 + 2 * h, 176 + 2 * h, 177 + 2 * h, 180 + h) for h in range(2)])
    a("v_lshlrev_b32 v20, 3, v2")
    a("v_add_u32 v20, 0x%x, v20" % STL)
    a("s_lshl_b32 s25, s3, 8")
    a("v_add_u32 v21, s25, v20")
    a("v_lshrrev_b32 v22, 2, v2")
    a("v_cmp_eq_u32 vcc, v22, v3")
    a("s_and_saveexec_b64 s[26:27], vcc")
    a("ds_write_b64 v21, v[176:177] offset:%d" % 0)
    a("ds_write_b64 v21, v[178:179] offset:%d" % 128)
    a("s_mov_b64 exec, s[26:27]")
    a("s_waitcnt lgkmcnt(0)")
    a("s_barrier")
    for lam in range(8):
        a("ds_read_b64 v[%d:%d], v20 offset:%d" % (96 + 2 * lam, 97 + 2 * lam, lam * 128))
    a("s_mul_i32 s25, s16, %d" % (8 * 56))
    a("s_add_u32 s25, s25, s24")
    a("s_lshl_b32 s25, s25, 10")
    a("s_add_u32 s25, s25, 0x%x" % HB)
    a("s_waitcnt lgkmcnt(0)")
    for lam in range(8):
        m = 96 + 2 * lam; rs = m + 1
        tb = 28 + 8 * (lam % 4)
        for T in range(2):
            c = (T * 8 + lam) * 4
            for i in range(4):
                a("v_accvgpr_read_b32 v%d, a%d" % (tb + 4 * T + i, c + i))
        for T in range(2):
            for i in range(4):
                a("v_fma_f32 v%d, -v%d, v%d, v%d" % (tb + 4 * T + i, m, CSR + 4 * T + i, tb + 4 * T + i))
        for i in range(8):
            a("v_mul_f32 v%d, v%d, v%d" % (tb + i, tb + i, rs))
        for i in range(8):
            a("v_max_f32 v%d, 0, v%d" % (tb + i, tb + i))
        o = 128 + 4 * (lam % 4)
        for i in range(4):
            a("v_cvt_pk_bf16_f32 v%d, v%d, v%d" % (o + i, tb + 2 * i, tb + 2 * i + 1))
        a("buffer_store_dwordx4 v[%d:%d], v9, s[4:7], s25 offen" % (o, o + 3))
        a("s_add_u32 s25, s25, %d" % (56 * 1024))
    a.stamp_flush(slot)
    a.label("L_%s_end" % name)
    a("s_endpgm")
    return a.text(), kernel_desc(name, 248, agpr=80), 131072 + 1024

def gen_gemm2(name, XRES, XOUT, STOUT, final, slot=2):
    a = Asm()
    a.raw(kernel_header(name))
    RS = 272; RW = 64 * RS
    OT = 0; RB = 9216
    a("s_cmp_ge_u32 s2, 256")
    a("s_cbranch_scc1 L_%s_end" % name)
    a("s_load_dwordx2 s[12:13], s[0:1], 96")
    if final:
        a("s_load_dwordx2 s[14:15], s[0:1], 80")
    common_ids(a)
    a("s_and_b32 s16, s2, 7")
    a("s_lshl_b32 s16, s16, 2")
    a("s_bfe_u32 s17, s2, 0x20003")
    a("s_add_u32 s16, s16, s17")
    a("s_lshr_b32 s17, s2, 5")
    a("s_waitcnt lgkmcnt(0)")
    a.srd(4, 12, WS_SIZE)
    if final:
        a.srd(8, 14, 0x200000)
    a.stamp()
    a("v_lshlrev_b32 v5, 4, v1")
    for t in range(1, 4):
        a("v_add_u32 v%d, %d, v5" % (5 + t, t * 57344))
    a("s_mul_i32 s18, s16, %d" % (4 * 56))
    a("s_mul_i32 s19, s3, 14")
    a("s_add_u32 s18, s18, s19")
    a("s_lshl_b32 s18, s18, 10")
    a("s_add_u32 s18, s18, 0x%x" % HB)
    a("s_mul_i32 s20, s17, 56")
    a("s_add_u32 s20, s20, s19")
    a("s_lshl_b32 s20, s20, 12")
    a("s_add_u32 s20, s20, 0x%x" % W2F)
    DEPTH = 7
    PRE = 3
    RING = 24
    last = {}
    def issue_parts(ks):
        b = RING + (ks % DEPTH) * 32
        parts = []
        for t in range(4):
            def fa(t=t):
                a.vmem("buffer_load_dwordx4 v[%d:%d], v%d, s[4:7], s18 offen" % (b + 4 * t, b + 4 * t + 3, 5 + t))
            parts.append(fa)
            def fb(t=t):
                last[ks] = a.vmem("buffer_load_dwordx4 v[%d:%d], v5, s[4:7], s20 offen offset:%d" % (b + 16 + 4 * t, b + 19 + 4 * t, 1024 * t))
                if t == 3:
                    a("s_add_u32 s18, s18, 1024")
                    a("s_add_u32 s20, s20, 4096")
            parts.append(fb)
        return parts
    for ks in range(PRE):
        for f in issue_parts(ks): f()
    for r in range(64):
        a("v_accvgpr_write_b32 a%d, 0" % r)
    a.stamp()
    nxt = PRE
    for ks in range(14):
        parts = []
        while nxt < 14 and nxt < ks + DEPTH and len(parts) < 16:
            if nxt >= ks + DEPTH - 1 + 1: break
            parts += issue_parts(nxt); nxt += 1
        a.wait_vm(last[ks])
        if ks == 0: a.stamp()
        b = RING + (ks % DEPTH) * 32
        k = 0
        per = 1 if len(parts) > 8 else 2
        for ta in range(4):
            for tb in range(4):
                c = (ta * 4 + tb) * 4
                a("v_mfma_f32_16x16x32_bf16 a[%d:%d], v[%d:%d], v[%d:%d], a[%d:%d]" % (
                    c, c + 3, b + 4 * ta, b + 4 * ta + 3, b + 16 + 4 * tb, b + 19 + 4 * tb, c, c + 3))
                k += 1
                if k % per == 0 and parts:
                    parts.pop(0)()
        assert not parts
    a.stamp()
    a("v_mul_u32_u24 v9, %d, v1" % XTS)
    a("s_mul_i32 s21, s17, %d" % (64 * XTS))
    a("s_lshl_b32 s22, s16, 7")
    a("s_add_u32 s21, s21, s22")
    a("s_lshl_b32 s22, s3, 5")
    a("s_add_u32 s21, s21, s22")
    a("s_add_u32 s22, s21, 0x%x" % XRES)
    ir = a.vmem("buffer_load_dwordx4 v[24:27], v9, s[4:7], s22 offen")
    ir = a.vmem("buffer_load_dwordx4 v[28:31], v9, s[4:7], s22 offen offset:16")
    a("v_mul_u32_u24 v10, %d, v2" % RS)
    a("v_lshl_add_u32 v10, v3, 4, v10")
    a("s_mul_i32 s23, s3, %d" % RW)
    a("s_add_u32 s23, s23, %d" % RB)
    a("v_add_u32 v10, s23, v10")
    a.nop(8)
    for ta in range(4):
        for tb in range(4):
            c = (ta * 4 + tb) * 4
            a("ds_write_b128 v10, a[%d:%d] offset:%d" % (c, c + 3, tb * 16 * RS + ta * 64))
    a("s_waitcnt lgkmcnt(0)")
    a("s_barrier")
    a("v_mul_u32_u24 v11, %d, v1" % RS)
    a("s_lshl_b32 s23, s3, 6")
    a("v_add_u32 v11, s23, v11")
    for p in range(4):
        for k in range(4):
            a("ds_read_b128 v[%d:%d], v11 offset:%d" % (32 + 16 * p + 4 * k, 35 + 16 * p + 4 * k, RB + p * RW + 16 * k))
    a("s_waitcnt lgkmcnt(0)")
    for k in range(16):
        a("v_add_f32 v%d, v%d, v%d" % (32 + k, 32 + k, 48 + k))
        a("v_add_f32 v%d, v%d, v%d" % (64 + k, 64 + k, 80 + k))
    for k in range(16):
        a("v_add_f32 v%d, v%d, v%d" % (32 + k, 32 + k, 64 + k))
    for k in range(16):
        a.bfr(32 + k, 32 + k)
    a.wait_vm(ir)
    for k in range(16):
        src = 24 + k // 2
        if k % 2 == 0:
            a("v_lshlrev_b32 v%d, 16, v%d" % (48 + k, src))
        else:
            a("v_and_b32 v%d, 0xffff0000, v%d" % (48 + k, src))
        a("v_add_f32 v%d, v%d, v%d" % (32 + k, 32 + k, 48 + k))
    for k in range(8):
        a("v_cvt_pk_bf16_f32 v%d, v%d, v%d" % (64 + k, 32 + 2 * k, 33 + 2 * k))
    if not final:
        a("s_add_u32 s22, s21, 0x%x" % XOUT)
        a("buffer_store_dwordx4 v[64:67], v9, s[4:7], s22 offen")
        a("buffer_store_dwordx4 v[68:71], v9, s[4:7], s22 offen offset:16")
        for k in range(16):
            src = 64 + k // 2
            if k % 2 == 0:
                a("v_lshlrev_b32 v%d, 16, v%d" % (32 + k, src))
            else:
                a("v_and_b32 v%d, 0xffff0000, v%d" % (32 + k, src))
            a("v_mul_f32 v%d, v%d, v%d" % (48 + k, 32 + k, 32 + k))
        a("s_barrier")
        a("v_lshlrev_b32 v12, 2, v1")
        a("s_mul_i32 s23, s3, %d" % RW)
        a("s_add_u32 s23, s23, %d" % RB)
        a("v_add_u32 v12, s23, v12")
        for k in range(32):
            a("ds_write_b32 v12, v%d offset:%d" % (32 + k, k * 260))
        a("s_waitcnt lgkmcnt(0)")
        a("v_and_b32 v13, 31, v1")
        a("v_mul_u32_u24 v13, 260, v13")
        a("v_lshrrev_b32 v14, 5, v1")
        a("v_lshl_add_u32 v13, v14, 7, v13")
        a("v_add_u32 v13, s23, v13")
        for c in range(32):
            a("ds_read_b32 v%d, v13 offset:%d" % (96 + c, 4 * c))
        a("s_waitcnt lgkmcnt(0)")
        n = 32
        while n > 1:
            n //= 2
            for c in range(n):
                a("v_add_f32 v%d, v%d, v%d" % (96 + c, 96 + c, 96 + n + c))
        a("v_mov_b32 v97, v96")
        a.nop(2)
        a("v_permlane32_swap_b32 v96, v97")
        a.nop(1)
        a("v_add_f32 v96, v96, v97")
        a("v_lshlrev_b32 v13, 3, v2")
        a("v_bfe_u32 v14, v1, 4, 1")
        a("v_lshl_add_u32 v13, v14, 2, v13")
        a("s_lshl_b32 s22, s16, 9")
        a("s_lshl_b32 s23, s3, 7")
        a("s_add_u32 s22, s22, s23")
        a("s_add_u32 s22, s22, 0x%x" % STOUT)
        a("v_cmp_gt_u32 vcc, 32, v1")
        a("s_and_saveexec_b64 s[26:27], vcc")
        a("buffer_atomic_add_f32 v96, v13, s[4:7], s22 offen")
    else:
        a("v_mul_u32_u24 v12, 144, v1")
        a("s_lshl_b32 s23, s3, 5")
        a("v_add_u32 v12, s23, v12")
        a("ds_write_b128 v12, v[64:67] offset:%d" % OT)
        a("ds_write_b128 v12, v[68:71] offset:%d" % (OT + 16))
        a("s_waitcnt lgkmcnt(0)")
        a("s_barrier")
        a("v_lshrrev_b32 v13, 2, v2")
        a("v_lshl_add_u32 v13, v3, 3, v13")
        a("v_mul_u32_u24 v13, 144, v13")
        a("v_and_b32 v14, 3, v2")
        a("v_lshl_add_u32 v13, v14, 3, v13")
        a("v_add_u32 v13, s23, v13")
        a("ds_read_b64_tr_b16 v[72:73], v13 offset:%d" % OT)
        a("ds_read_b64_tr_b16 v[74:75], v13 offset:%d" % (OT + 576))
        a("ds_read_b64_tr_b16 v[76:77], v13 offset:%d" % (OT + 4608))
        a("ds_read_b64_tr_b16 v[78:79], v13 offset:%d" % (OT + 5184))
        a("s_lshl_b32 s23, s3, 4")
        a("v_add_u32 v14, s23, v2")
        a("v_lshlrev_b32 v14, 10, v14")
        a("v_lshl_add_u32 v14, v3, 4, v14")
        a("s_lshl_b32 s22, s16, 16")
        a("s_lshl_b32 s23, s17, 7")
        a("s_add_u32 s22, s22, s23")
        a("s_waitcnt lgkmcnt(0)")
        a("buffer_store_dwordx4 v[72:75], v14, s[8:11], s22 offen")
        a("buffer_store_dwordx4 v[76:79], v14, s[8:11], s22 offen offset:64")
    a.stamp_flush(slot)
    a.label("L_%s_end" % name)
    a("s_endpgm")
    return a.text(), kernel_desc(name, 248, agpr=64), RB + 4 * RW
```

```python
from asmlib import *

XTS = 4352
XT0 = 0x000000
XT1 = 0x240000
XT2 = 0x480000
XT3 = 0x6c0000
ST0 = 0x900000
ST2 = 0x904000
CS  = 0x908000
KREV = 0x980000
KSTRIDE = 4224
W1F = 0xC00000
W2F = 0xE00000
HB  = 0x1000000
WS_SIZE = 0x2000000
LOG2E = 0x3fb8aa3b
INV2PI = 0x3e22f983
ONES_BF = 0x3f803f80

def common_ids(a):
    a("v_and_b32 v1, 63, v0")
    a("v_lshrrev_b32 v4, 6, v0")
    a("v_and_b32 v2, 15, v0")
    a("v_bfe_u32 v3, v0, 4, 2")
    a("v_readfirstlane_b32 s3, v4")

def gen_prep(name):
    a = Asm()
    a.raw(kernel_header(name))
    a("s_load_dwordx2 s[12:13], s[0:1], 96")
    common_ids(a)
    a.stamp()
    a("s_cmp_lt_u32 s2, 256"); a("s_cbranch_scc1 L_prep_kg")
    a("s_cmp_lt_u32 s2, 384"); a("s_cbranch_scc1 L_prep_xt")
    a("s_cmp_lt_u32 s2, 440"); a("s_cbranch_scc1 L_prep_w1")
    a("s_cmp_lt_u32 s2, 552"); a("s_cbranch_scc1 L_prep_w2")
    a("s_endpgm")

    a.label("L_prep_xt")
    a("s_load_dwordx2 s[14:15], s[0:1], 0")
    a("s_sub_u32 s16, s2, 256")
    a("s_waitcnt lgkmcnt(0)")
    a.srd(4, 12, WS_SIZE)
    a.srd(8, 14, 0x200000)
    a("v_lshrrev_b32 v5, 4, v0")
    a("v_lshlrev_b32 v7, 10, v5")
    a("v_lshl_add_u32 v7, v2, 4, v7")
    a("s_lshl_b32 s19, s16, 14")
    for k in range(4):
        a("buffer_load_dwordx4 v[%d:%d], v7, s[8:11], s19 offen offset:%d" % (8 + 4 * k, 11 + 4 * k, 256 * k))
    a("s_cmp_ge_u32 s16, 16")
    a("s_cbranch_scc1 L_prep_xt_nz")
    a("v_mov_b32 v40, 0")
    a("v_lshlrev_b32 v41, 2, v0")
    a("s_lshl_b32 s20, s16, 10")
    a("s_add_u32 s20, s20, 0x%x" % ST2)
    a("buffer_store_dword v40, v41, s[4:7], s20 offen")
    a.label("L_prep_xt_nz")
    a("s_mov_b32 s21, 0x%x" % ONES_BF)
    a("v_mov_b32 v30, s21")
    a("v_mul_u32_u24 v31, 1040, v5")
    a("v_lshl_add_u32 v31, v2, 4, v31")
    a("s_waitcnt vmcnt(0)")
    for k in range(4):
        a("ds_write_b128 v31, v[%d:%d] offset:%d" % (8 + 4 * k, 11 + 4 * k, 256 * k))
    a("v_dot2_f32_bf16 v32, v8, v30, 0")
    a("v_dot2_f32_bf16 v33, v8, v8, 0")
    for k in range(1, 16):
        a("v_dot2_f32_bf16 v32, v%d, v30, v32" % (8 + k))
        a("v_dot2_f32_bf16 v33, v%d, v%d, v33" % (8 + k, 8 + k))
    a.nop(4)
    for mode in ("quad_perm:[1,0,3,2]", "quad_perm:[2,3,0,1]", "row_half_mirror", "row_mirror"):
        for d in range(32, 34):
            a("v_add_f32_dpp v%d, v%d, v%d %s row_mask:0xf bank_mask:0xf" % (d, d, d, mode))
        a.nop(2)
    a("v_lshlrev_b32 v34, 3, v5")
    a("s_lshl_b32 s19, s16, 7")
    a("s_add_u32 s19, s19, 0x%x" % ST0)
    a("v_cmp_eq_u32 vcc, 0, v2")
    a("s_and_saveexec_b64 s[22:23], vcc")
    a("buffer_store_dwordx2 v[32:33], v34, s[4:7], s19 offen")
    a("s_mov_b64 exec, s[22:23]")
    a("s_waitcnt lgkmcnt(0)")
    a("s_barrier")
    a("v_lshrrev_b32 v35, 2, v2")
    a("v_mul_u32_u24 v35, 1040, v35")
    a("v_and_b32 v36, 3, v2")
    a("v_lshl_add_u32 v35, v36, 3, v35")
    a("v_lshl_add_u32 v35, v3, 6, v35")
    a("s_lshl_b32 s19, s3, 8")
    a("v_add_u32 v35, s19, v35")
    for e in range(2):
        for rho in range(4):
            r = 8 + 8 * e + 2 * rho
            a("ds_read_b64_tr_b16 v[%d:%d], v35 offset:%d" % (r, r + 1, rho * 4160 + e * 32))
    a("v_lshl_add_u32 v36, v3, 5, v2")
    a("s_lshl_b32 s19, s3, 7")
    a("v_add_u32 v36, s19, v36")
    a("s_movk_i32 s19, %d" % XTS)
    a("v_mul_lo_u32 v36, v36, s19")
    a("v_add_u32 v37, %d, v36" % (16 * XTS))
    a("s_lshl_b32 s19, s16, 5")
    a("s_add_u32 s19, s19, 0x%x" % XT0)
    a("s_waitcnt lgkmcnt(0)")
    a("buffer_store_dwordx4 v[8:11], v36, s[4:7], s19 offen")
    a("buffer_store_dwordx4 v[12:15], v36, s[4:7], s19 offen offset:16")
    a("buffer_store_dwordx4 v[16:19], v37, s[4:7], s19 offen")
    a("buffer_store_dwordx4 v[20:23], v37, s[4:7], s19 offen offset:16")
    a.stamp_flush(6); a.nst = 1
    a("s_endpgm")

    a.label("L_prep_w1")
    a("s_load_dwordx2 s[14:15], s[0:1], 64")
    a("s_sub_u32 s16, s2, 384")
    a("s_waitcnt lgkmcnt(0)")
    a.srd(4, 12, WS_SIZE)
    a.srd(8, 14, 512 * 1792 * 2)
    a("v_lshrrev_b32 v5, 2, v0")
    a("v_and_b32 v6, 3, v0")
    a("s_movk_i32 s17, 3584")
    a("v_mul_lo_u32 v7, v5, s17")
    a("v_lshl_add_u32 v7, v6, 4, v7")
    a("s_lshl_b32 s18, s16, 6")
    for e in range(8):
        a("buffer_load_dwordx4 v[%d:%d], v7, s[8:11], s18 offen" % (8 + 4 * e, 11 + 4 * e))
        if e < 7:
            a("s_add_u32 s18, s18, %d" % (64 * 3584))
    a("v_mul_u32_u24 v40, 80, v5")
    a("v_lshl_add_u32 v40, v6, 4, v40")
    for e in range(8):
        a("s_waitcnt vmcnt(%d)" % (7 - e))
        a("ds_write_b128 v40, v[%d:%d] offset:%d" % (8 + 4 * e, 11 + 4 * e, e * 5120))
    a("s_waitcnt lgkmcnt(0)")
    a("s_barrier")
    a("v_lshrrev_b32 v41, 2, v2")
    a("v_lshl_add_u32 v41, v3, 2, v41")
    a("v_mul_u32_u24 v41, 80, v41")
    a("v_and_b32 v42, 3, v2")
    a("v_lshl_add_u32 v41, v42, 3, v41")
    a("s_mul_i32 s19, s3, 10240")
    a("v_add_u32 v41, s19, v41")
    for kk in range(4):
        for T in range(2):
            for rho in range(2):
                r = 8 + (kk * 2 + T) * 4 + rho * 2
                a("ds_read_b64_tr_b16 v[%d:%d], v41 offset:%d" % (r, r + 1, kk * 2560 + rho * 1280 + T * 32))
    a("s_mov_b32 s21, 0x%x" % ONES_BF)
    a("v_mov_b32 v43, s21")
    a("v_lshlrev_b32 v44, 4, v1")
    a("s_lshl_b32 s19, s3, 13")
    a("v_add_u32 v44, s19, v44")
    a("s_lshl_b32 s19, s16, 15")
    a("s_add_u32 s19, s19, 0x%x" % W1F)
    a("s_add_u32 s20, s19, 4096")
    a("s_waitcnt lgkmcnt(0)")
    for kk in range(4):
        for T in range(2):
            r = 8 + (kk * 2 + T) * 4
            a("buffer_store_dwordx4 v[%d:%d], v44, s[4:7], s%d offen offset:%d" %
              (r, r + 3, 19 if kk < 2 else 20, (kk % 2) * 2048 + T * 1024))
    for T in range(2):
        first = True
        for kk in range(4):
            r = 8 + (kk * 2 + T) * 4
            for k in range(4):
                a("v_dot2_f32_bf16 v%d, v%d, v43, %s" % (46 + T, r + k, "0" if first else "v%d" % (46 + T)))
                first = False
    a.nop(4)
    a("v_lshlrev_b32 v45, 2, v1")
    a("s_lshl_b32 s19, s3, 9")
    a("v_add_u32 v45, s19, v45")
    a("ds_write_b32 v45, v46 offset:40960")
    a("ds_write_b32 v45, v47 offset:41216")
    a("s_waitcnt lgkmcnt(0)")
    a("s_barrier")
    a("v_cmp_gt_u32 vcc, 32, v0")
    a("s_and_saveexec_b64 s[22:23], vcc")
    a("s_cbranch_execz L_prep_w1_end")
    a("v_bfe_u32 v48, v0, 4, 1")
    a("v_lshlrev_b32 v48, 8, v48")
    a("v_lshl_add_u32 v48, v2, 2, v48")
    for w in range(4):
        for g in range(4):
            a("ds_read_b32 v%d, v48 offset:%d" % (50 + w * 4 + g, 40960 + w * 512 + g * 64))
    a("s_waitcnt lgkmcnt(0)")
    for k in range(1, 16):
        a("v_add_f32 v50, v50, v%d" % (50 + k))
    a("v_lshlrev_b32 v49, 2, v0")
    a("s_lshl_b32 s19, s16, 7")
    a("s_add_u32 s19, s19, 0x%x" % CS)
    a("buffer_store_dword v50, v49, s[4:7], s19 offen")
    a.label("L_prep_w1_end")
    a.stamp_flush(6); a.nst = 1
    a("s_endpgm")

    a.label("L_prep_w2")
    a("s_load_dwordx2 s[14:15], s[0:1], 72")
    a("s_sub_u32 s16, s2, 440")
    a("s_lshr_b32 s17, s16, 3")
    a("s_and_b32 s18, s16, 7")
    a("s_waitcnt lgkmcnt(0)")
    a.srd(4, 12, WS_SIZE)
    a.srd(8, 14, 512 * 1792 * 2)
    a("v_lshrrev_b32 v5, 3, v0")
    a("v_and_b32 v6, 7, v0")
    a("v_lshlrev_b32 v7, 10, v5")
    a("v_lshl_add_u32 v7, v6, 4, v7")
    a("s_lshl_b32 s19, s17, 17")
    a("s_lshl_b32 s20, s18, 7")
    a("s_add_u32 s19, s19, s20")
    for e in range(4):
        a("buffer_load_dwordx4 v[%d:%d], v7, s[8:11], s19 offen" % (8 + 4 * e, 11 + 4 * e))
        if e < 3:
            a("s_add_u32 s19, s19, 32768")
    a("v_mul_u32_u24 v40, 144, v5")
    a("v_lshl_add_u32 v40, v6, 4, v40")
    for e in range(4):
        a("s_waitcnt vmcnt(%d)" % (3 - e))
        a("ds_write_b128 v40, v[%d:%d] offset:%d" % (8 + 4 * e, 11 + 4 * e, e * 4608))
    a("s_waitcnt lgkmcnt(0)")
    a("s_barrier")
    a("v_lshrrev_b32 v41, 2, v2")
    a("v_lshl_add_u32 v41, v3, 2, v41")
    a("v_mul_u32_u24 v41, 144, v41")
    a("v_and_b32 v42, 3, v2")
    a("v_lshl_add_u32 v41, v42, 3, v41")
    a("s_mul_i32 s19, s3, 4608")
    a("v_add_u32 v41, s19, v41")
    for Dt in range(4):
        for rho in range(2):
            r = 8 + Dt * 4 + rho * 2
            a("ds_read_b64_tr_b16 v[%d:%d], v41 offset:%d" % (r, r + 1, rho * 2304 + Dt * 32))
    a("v_lshlrev_b32 v44, 4, v1")
    a("s_lshl_b32 s19, s3, 12")
    a("v_add_u32 v44, s19, v44")
    a("s_mul_i32 s19, s18, 56")
    a("s_lshl_b32 s20, s17, 2")
    a("s_add_u32 s19, s19, s20")
    a("s_lshl_b32 s19, s19, 12")
    a("s_add_u32 s19, s19, 0x%x" % W2F)
    a("s_waitcnt lgkmcnt(0)")
    for Dt in range(4):
        r = 8 + Dt * 4
        a("buffer_store_dwordx4 v[%d:%d], v44, s[4:7], s19 offen offset:%d" % (r, r + 3, Dt * 1024))
    a.stamp_flush(6); a.nst = 1
    a("s_endpgm")

    PRM = 0
    BT = 4096
    TB = 4352
    TBS = 9728
    a.label("L_prep_kg")
    a("s_load_dwordx4 s[16:19], s[0:1], 8")
    a("s_load_dwordx4 s[20:23], s[0:1], 24")
    a("s_load_dwordx2 s[24:25], s[0:1], 40")
    a("s_waitcnt lgkmcnt(0)")
    a.srd(4, 12, WS_SIZE)
    a.srd(28, 16, 131072)
    a.srd(32, 18, 131072)
    a.srd(36, 20, 131072)
    a.srd(40, 22, 131072)
    a.srd(44, 24, 1024)
    a("v_lshlrev_b32 v5, 1, v0")
    a("s_lshl_b32 s26, s2, 9")
    a("buffer_load_ushort v8, v5, s[28:31], s26 offen")
    a("buffer_load_ushort v9, v5, s[32:35], s26 offen")
    a("buffer_load_ushort v10, v5, s[36:39], s26 offen")
    a("buffer_load_ushort v11, v5, s[40:43], s26 offen")
    a("v_lshrrev_b32 v6, 7, v0")
    a("v_lshlrev_b32 v6, 1, v6")
    a("s_lshl_b32 s27, s2, 2")
    a("buffer_load_ushort v12, v6, s[44:47], s27 offen")
    a("v_and_b32 v13, 7, v0")
    a("v_lshrrev_b32 v14, 3, v0")
    a("v_lshl_add_u32 v13, v14, 7, v13")
    a("v_and_b32 v14, 3, v0")
    a("v_lshlrev_b32 v14, 1, v14")
    a("v_subrev_u32 v15, 16, v0")
    a("v_lshrrev_b32 v15, 2, v15")
    a("v_lshl_add_u32 v14, v15, 7, v14")
    a("v_add_u32 v14, 0x100, v14")
    a("v_cmp_le_u32 vcc, 16, v0")
    a.nop(2)
    a("v_cndmask_b32 v13, v13, v14, vcc")
    a("v_and_b32 v14, 1, v0")
    a("v_lshlrev_b32 v14, 2, v14")
    a("v_subrev_u32 v15, 24, v0")
    a("v_lshrrev_b32 v15, 1, v15")
    a("v_lshl_add_u32 v14, v15, 7, v14")
    a("v_add_u32 v14, 0x200, v14")
    a("v_cmp_le_u32 vcc, 24, v0")
    a.nop(2)
    a("v_cndmask_b32 v13, v13, v14, vcc")
    a("v_subrev_u32 v15, 32, v0")
    a("v_lshlrev_b32 v14, 7, v15")
    a("v_add_u32 v14, 0x400, v14")
    a("v_cmp_le_u32 vcc, 32, v0")
    a.nop(2)
    a("v_cndmask_b32 v13, v13, v14, vcc")
    a("v_mov_b32 v14, 0x900")
    a("v_cmp_lt_u32 vcc, 40, v0")
    a.nop(2)
    a("v_cndmask_b32 v13, v13, v14, vcc")
    a("v_lshlrev_b32 v14, 2, v0")
    a("v_cmp_gt_u32 vcc, 48, v0")
    a("s_and_saveexec_b64 s[48:49], vcc")
    a("ds_write_b32 v14, v13 offset:%d" % BT)
    a("s_mov_b64 exec, s[48:49]")
    a("s_mov_b32 s26, 0x%x" % LOG2E)
    a("s_mov_b32 s27, 0x%x" % INV2PI)
    a("s_waitcnt vmcnt(0)")
    for r in range(8, 13):
        a("v_lshlrev_b32 v%d, 16, v%d" % (r, r))
    a("v_mul_f32 v12, s26, v12")
    a("v_mul_f32 v8, s26, v8")
    a("v_exp_f32 v12, v12")
    a("v_exp_f32 v8, v8")
    a.nop(1)
    a.bfr(12, 12)
    a.bfr(8, 8)
    a("v_mul_f32 v8, v8, v12")
    a("v_mul_f32 v9, v9, v12")
    a("v_mul_f32 v10, v10, v12")
    a("v_mul_f32 v11, v11, v12")
    a("v_mul_f32 v16, s26, v8")
    a("v_sub_f32 v16, 0, v16")
    a("v_mul_f32 v17, s27, v9")
    a("v_add_f32 v18, v10, v10")
    a("v_add_f32 v19, v11, v11")
    a("v_lshlrev_b32 v14, 4, v0")
    a("ds_write_b128 v14, v[16:19] offset:%d" % PRM)
    a("s_waitcnt lgkmcnt(0)")
    a("s_barrier")
    a.stamp()
    a("v_lshlrev_b32 v14, 2, v2")
    for t in range(3):
        a("ds_read_b32 v%d, v14 offset:%d" % (20 + t, BT + 64 * t))
    a("v_lshlrev_b32 v23, 3, v2")
    a("v_cvt_f32_u32 v23, v23")
    a("v_lshlrev_b32 v24, 4, v3")
    a("s_lshl_b32 s26, s3, 10")
    a("v_add_u32 v24, s26, v24")
    a("ds_read_b128 v[28:31], v24 offset:%d" % PRM)
    for r in range(64, 76):
        a("v_mov_b32 v%d, 0" % r)
    a("s_waitcnt lgkmcnt(1)")
    for t in range(3):
        a("v_cvt_f32_u32 v%d, v%d" % (20 + t, 20 + t))
    for q in range(16):
        P = 28 + 4 * (q % 2)
        Pn = 28 + 4 * ((q + 1) % 2)
        a("s_waitcnt lgkmcnt(0)")
        if q < 15:
            a("ds_read_b128 v[%d:%d], v24 offset:%d" % (Pn, Pn + 3, PRM + (q + 1) * 64))
        for k in range(4):
            a("v_mul_f32 v%d, v%d, v%d" % (36 + k, P, 20 + k))
            a("v_mul_f32 v%d, v%d, v%d" % (40 + k, P + 1, 20 + k))
        for k in range(4):
            a("v_exp_f32 v%d, v%d" % (36 + k, 36 + k))
            a("v_fract_f32 v%d, v%d" % (40 + k, 40 + k))
        for k in range(4):
            a("v_sin_f32 v%d, v%d" % (44 + k, 40 + k))
            a("v_cos_f32 v%d, v%d" % (48 + k, 40 + k))
        a.nop(1)
        for k in range(4):
            a("v_mul_f32 v%d, v%d, v%d" % (44 + k, 36 + k, 44 + k))
            a("v_mul_f32 v%d, v%d, v%d" % (48 + k, 36 + k, 48 + k))
        for t in range(3):
            a("v_mul_f32 v%d, v%d, v%d" % (52 + t, P + 3, 44 + t))
            a("v_mul_f32 v%d, v%d, v%d" % (56 + t, P + 3, 48 + t))
        for t in range(3):
            a("v_fma_f32 v%d, v%d, v%d, -v%d" % (52 + t, P + 2, 48 + t, 52 + t))
            a("v_fma_f32 v%d, -v%d, v%d, -v%d" % (56 + t, P + 2, 44 + t, 56 + t))
        a.nop(2)
        for t in range(3):
            a("v_mfma_f32_16x16x4_f32 v[%d:%d], v%d, v51, v[%d:%d]" % (64 + 4 * t, 67 + 4 * t, 52 + t, 64 + 4 * t, 67 + 4 * t))
        for t in range(3):
            a("v_mfma_f32_16x16x4_f32 v[%d:%d], v%d, v47, v[%d:%d]" % (64 + 4 * t, 67 + 4 * t, 56 + t, 64 + 4 * t, 67 + 4 * t))
    a.stamp()
    a("v_lshlrev_b32 v14, 4, v3")
    for t in range(3):
        a("ds_read_b128 v[%d:%d], v14 offset:%d" % (80 + 4 * t, 83 + 4 * t, BT + 64 * t))
    a("v_lshlrev_b32 v15, 5, v2")
    a("s_lshr_b32 s26, s3, 1")
    a("s_mul_i32 s26, s26, %d" % TBS)
    a("s_add_u32 s26, s26, %d" % TB)
    a("v_add_u32 v15, s26, v15")
    a("s_waitcnt lgkmcnt(0)")
    for k in range(12):
        a("v_lshl_add_u32 v%d, v%d, 2, v15" % (80 + k, 80 + k))
    a.nop(12)
    a("s_and_b32 s27, s3, 1")
    a("s_cmp_eq_u32 s27, 0")
    a("s_cbranch_scc1 L_prep_kg_a")
    for k in range(12):
        a("ds_write_b32 v%d, v%d" % (80 + k, 64 + k))
    a("s_waitcnt lgkmcnt(0)")
    a("s_barrier")
    a("s_barrier")
    a("s_branch L_prep_kg_b")
    a.label("L_prep_kg_a")
    a("s_barrier")
    for k in range(12):
        a("ds_read_b32 v%d, v%d" % (96 + k, 80 + k))
    a("s_waitcnt lgkmcnt(0)")
    for k in range(12):
        a("v_add_f32 v%d, v%d, v%d" % (96 + k, 96 + k, 64 + k))
    for k in range(12):
        a("ds_write_b32 v%d, v%d" % (80 + k, 96 + k))
    a("s_waitcnt lgkmcnt(0)")
    a("s_barrier")
    a.label("L_prep_kg_b")
    a.stamp()
    a("v_and_b32 v5, 127, v0")
    a("v_lshlrev_b32 v6, 4, v5")
    a("v_sub_u32 v6, 0x7ff, v6")
    a("v_lshrrev_b32 v7, 7, v0")
    a("s_movk_i32 s26, %d" % TBS)
    a("v_mul_lo_u32 v7, v7, s26")
    a("v_add_u32 v7, %d, v7" % TB)
    for k in range(16):
        a("v_subrev_u32 v%d, %d, v6" % (16 + k, k))
        a("v_cvt_f32_u32 v%d, v%d" % (16 + k, 16 + k))
    for k in range(16):
        a.bfr(16 + k, 16 + k)
    for k in range(16):
        a("v_cvt_u32_f32 v%d, v%d" % (16 + k, 16 + k))
        a("v_lshl_add_u32 v%d, v%d, 2, v7" % (16 + k, 16 + k))
    for k in range(16):
        a("ds_read_b32 v%d, v%d" % (32 + k, 16 + k))
    a("s_waitcnt lgkmcnt(0)")
    for k in range(8):
        a("v_cvt_pk_bf16_f32 v%d, v%d, v%d" % (48 + k, 32 + 2 * k, 33 + 2 * k))
    a("v_lshrrev_b32 v7, 7, v0")
    a("s_movk_i32 s26, %d" % KSTRIDE)
    a("v_mul_lo_u32 v7, v7, s26")
    a("v_lshl_add_u32 v8, v5, 5, v7")
    a("s_mul_i32 s26, s2, %d" % (2 * KSTRIDE))
    a("s_add_u32 s26, s26, 0x%x" % KREV)
    a("buffer_store_dwordx4 v[48:51], v8, s[4:7], s26 offen")
    a("buffer_store_dwordx4 v[52:55], v8, s[4:7], s26 offen offset:16")
    for k in range(4):
        a("v_mov_b32 v%d, 0" % (56 + k))
    a("v_lshl_add_u32 v8, v5, 4, v7")
    a("v_cmp_gt_u32 vcc, 8, v5")
    a("s_and_saveexec_b64 s[48:49], vcc")
    a("s_cbranch_execz L_prep_kg_end")
    a("s_add_u32 s26, s26, 4096")
    a("buffer_store_dwordx4 v[56:59], v8, s[4:7], s26 offen")
    a.label("L_prep_kg_end")
    a.stamp_flush(6)
    a("s_endpgm")
    return a.text(), kernel_desc(name, 128)
```

```python
import sys
from asmlib import *
from gen_prep import *
from gen_conv import *
from gen_gemm import *

def build():
    ks = []
    t, d = gen_prep("prep_kernel"); ks.append(("prep_kernel", t, d, 552, 49152))
    t, d, l = gen_conv("conv1_kernel", XT0, XT1, ST0); ks.append(("conv1_kernel", t, d, 256, l))
    t, d, l = gen_gemm1("g1a_kernel", XT1); ks.append(("g1a_kernel", t, d, 224, l))
    t, d, l = gen_gemm2("g2a_kernel", XT1, XT2, ST2, False); ks.append(("g2a_kernel", t, d, 256, l))
    t, d, l = gen_conv("conv2_kernel", XT2, XT3, ST2, slot=3); ks.append(("conv2_kernel", t, d, 256, l))
    t, d, l = gen_gemm1("g1b_kernel", XT3, slot=4); ks.append(("g1b_kernel", t, d, 224, l))
    t, d, l = gen_gemm2("g2b_kernel", XT3, 0, 0, True, slot=5); ks.append(("g2b_kernel", t, d, 256, l))
    out = []
    for (n, t, d, g, l) in ks:
        out.append("; @launch kernel=%s grid=(%d,1,1) block=(256,1,1) lds=%d" % (n, g, l))
    out.append('.amdgcn_target "amdgcn-amd-amdhsa--gfx950"')
    out.append(".text")
    for (n, t, d, g, l) in ks:
        out.append(t)
    out.append('.section .rodata,"a"')
    for (n, t, d, g, l) in ks:
        out.append(d)
    return "\n".join(out)

if __name__ == "__main__":
    path = sys.argv[1] if len(sys.argv) > 1 else "interleave_layers__ssm_conv_s4d__dense_activation_relu__prompt.s"
    if len(sys.argv) > 2: Asm.STAMPS = True
    open(path, "w").write(build())
    print("wrote", path)
```

```python
from asmlib import *

XTS = 4352
XT0 = 0x000000
XT1 = 0x240000
XT2 = 0x480000
XT3 = 0x6c0000
ST0 = 0x900000
ST2 = 0x904000
CS  = 0x908000
KREV = 0x980000
KSTRIDE = 4224
W1F = 0xC00000
W2F = 0xE00000
HB  = 0x1000000
WS_SIZE = 0x2000000
LOG2E = 0x3fb8aa3b
INV2PI = 0x3e22f983
ONES_BF = 0x3f803f80

def common_ids(a):
    a("v_and_b32 v1, 63, v0")
    a("v_lshrrev_b32 v4, 6, v0")
    a("v_and_b32 v2, 15, v0")
    a("v_bfe_u32 v3, v0, 4, 2")
    a("v_readfirstlane_b32 s3, v4")

def gen_prep(name):
    a = Asm()
    a.raw(kernel_header(name))
    a("s_load_dwordx2 s[12:13], s[0:1], 96")
    common_ids(a)
    a("s_cmp_lt_u32 s2, 256"); a("s_cbranch_scc1 L_prep_kg")
    a("s_cmp_lt_u32 s2, 384"); a("s_cbranch_scc1 L_prep_xt")
    a("s_cmp_lt_u32 s2, 440"); a("s_cbranch_scc1 L_prep_w1")
    a("s_cmp_lt_u32 s2, 552"); a("s_cbranch_scc1 L_prep_w2")
    a("s_endpgm")

    a.label("L_prep_xt")
    a("s_load_dwordx2 s[14:15], s[0:1], 0")
    a("s_sub_u32 s16, s2, 256")
    a("s_waitcnt lgkmcnt(0)")
    a.srd(4, 12, WS_SIZE)
    a.srd(8, 14, 0x200000)
    a("v_lshrrev_b32 v5, 4, v0")
    a("v_lshlrev_b32 v7, 10, v5")
    a("v_lshl_add_u32 v7, v2, 4, v7")
    a("s_lshl_b32 s19, s16, 14")
    for k in range(4):
        a("buffer_load_dwordx4 v[%d:%d], v7, s[8:11], s19 offen offset:%d" % (8 + 4 * k, 11 + 4 * k, 256 * k))
    a("s_cmp_ge_u32 s16, 16")
    a("s_cbranch_scc1 L_prep_xt_nz")
    a("v_mov_b32 v40, 0")
    a("v_lshlrev_b32 v41, 2, v0")
    a("s_lshl_b32 s20, s16, 10")
    a("s_add_u32 s20, s20, 0x%x" % ST2)
    a("buffer_store_dword v40, v41, s[4:7], s20 offen")
    a.label("L_prep_xt_nz")
    a("s_mov_b32 s21, 0x%x" % ONES_BF)
    a("v_mov_b32 v30, s21")
    a("v_mul_u32_u24 v31, 1040, v5")
    a("v_lshl_add_u32 v31, v2, 4, v31")
    a("s_waitcnt vmcnt(0)")
    for k in range(4):
        a("ds_write_b128 v31, v[%d:%d] offset:%d" % (8 + 4 * k, 11 + 4 * k, 256 * k))
    a("v_dot2_f32_bf16 v32, v8, v30, 0")
    a("v_dot2_f32_bf16 v33, v8, v8, 0")
    for k in range(1, 16):
        a("v_dot2_f32_bf16 v32, v%d, v30, v32" % (8 + k))
        a("v_dot2_f32_bf16 v33, v%d, v%d, v33" % (8 + k, 8 + k))
    a.nop(4)
    for mode in ("quad_perm:[1,0,3,2]", "quad_perm:[2,3,0,1]", "row_half_mirror", "row_mirror"):
        for d in range(32, 34):
            a("v_add_f32_dpp v%d, v%d, v%d %s row_mask:0xf bank_mask:0xf" % (d, d, d, mode))
        a.nop(2)
    a("v_lshlrev_b32 v34, 3, v5")
    a("s_lshl_b32 s19, s16, 7")
    a("s_add_u32 s19, s19, 0x%x" % ST0)
    a("v_cmp_eq_u32 vcc, 0, v2")
    a("s_and_saveexec_b64 s[22:23], vcc")
    a("buffer_store_dwordx2 v[32:33], v34, s[4:7], s19 offen")
    a("s_mov_b64 exec, s[22:23]")
    a("s_waitcnt lgkmcnt(0)")
    a("s_barrier")
    a("v_lshrrev_b32 v35, 2, v2")
    a("v_mul_u32_u24 v35, 1040, v35")
    a("v_and_b32 v36, 3, v2")
    a("v_lshl_add_u32 v35, v36, 3, v35")
    a("v_lshl_add_u32 v35, v3, 6, v35")
    a("s_lshl_b32 s19, s3, 8")
    a("v_add_u32 v35, s19, v35")
    for e in range(2):
        for rho in range(4):
            r = 8 + 8 * e + 2 * rho
            a("ds_read_b64_tr_b16 v[%d:%d], v35 offset:%d" % (r, r + 1, rho * 4160 + e * 32))
    a("v_lshl_add_u32 v36, v3, 5, v2")
    a("s_lshl_b32 s19, s3, 7")
    a("v_add_u32 v36, s19, v36")
    a("s_movk_i32 s19, %d" % XTS)
    a("v_mul_lo_u32 v36, v36, s19")
    a("v_add_u32 v37, %d, v36" % (16 * XTS))
    a("s_lshl_b32 s19, s16, 5")
    a("s_add_u32 s19, s19, 0x%x" % XT0)
    a("s_waitcnt lgkmcnt(0)")
    a("buffer_store_dwordx4 v[8:11], v36, s[4:7], s19 offen")
    a("buffer_store_dwordx4 v[12:15], v36, s[4:7], s19 offen offset:16")
    a("buffer_store_dwordx4 v[16:19], v37, s[4:7], s19 offen")
    a("buffer_store_dwordx4 v[20:23], v37, s[4:7], s19 offen offset:16")
    a("s_endpgm")

    a.label("L_prep_w1")
    a("s_load_dwordx2 s[14:15], s[0:1], 64")
    a("s_sub_u32 s16, s2, 384")
    a("s_waitcnt lgkmcnt(0)")
    a.srd(4, 12, WS_SIZE)
    a.srd(8, 14, 512 * 1792 * 2)
    a("v_lshrrev_b32 v5, 2, v0")
    a("v_and_b32 v6, 3, v0")
    a("s_movk_i32 s17, 3584")
    a("v_mul_lo_u32 v7, v5, s17")
    a("v_lshl_add_u32 v7, v6, 4, v7")
    a("s_lshl_b32 s18, s16, 6")
    for e in range(8):
        a("buffer_load_dwordx4 v[%d:%d], v7, s[8:11], s18 offen" % (8 + 4 * e, 11 + 4 * e))
        if e < 7:
            a("s_add_u32 s18, s18, %d" % (64 * 3584))
    a("v_mul_u32_u24 v40, 80, v5")
    a("v_lshl_add_u32 v40, v6, 4, v40")
    for e in range(8):
        a("s_waitcnt vmcnt(%d)" % (7 - e))
        a("ds_write_b128 v40, v[%d:%d] offset:%d" % (8 + 4 * e, 11 + 4 * e, e * 5120))
    a("s_waitcnt lgkmcnt(0)")
    a("s_barrier")
    a("v_lshrrev_b32 v41, 2, v2")
    a("v_lshl_add_u32 v41, v3, 2, v41")
    a("v_mul_u32_u24 v41, 80, v41")
    a("v_and_b32 v42, 3, v2")
    a("v_lshl_add_u32 v41, v42, 3, v41")
    a("s_mul_i32 s19, s3, 10240")
    a("v_add_u32 v41, s19, v41")
    for kk in range(4):
        for T in range(2):
            for rho in range(2):
                r = 8 + (kk * 2 + T) * 4 + rho * 2
                a("ds_read_b64_tr_b16 v[%d:%d], v41 offset:%d" % (r, r + 1, kk * 2560 + rho * 1280 + T * 32))
    a("s_mov_b32 s21, 0x%x" % ONES_BF)
    a("v_mov_b32 v43, s21")
    a("v_lshlrev_b32 v44, 4, v1")
    a("s_lshl_b32 s19, s3, 13")
    a("v_add_u32 v44, s19, v44")
    a("s_lshl_b32 s19, s16, 15")
    a("s_add_u32 s19, s19, 0x%x" % W1F)
    a("s_add_u32 s20, s19, 4096")
    a("s_waitcnt lgkmcnt(0)")
    for kk in range(4):
        for T in range(2):
            r = 8 + (kk * 2 + T) * 4
            a("buffer_store_dwordx4 v[%d:%d], v44, s[4:7], s%d offen offset:%d" %
              (r, r + 3, 19 if kk < 2 else 20, (kk % 2) * 2048 + T * 1024))
    for T in range(2):
        first = True
        for kk in range(4):
            r = 8 + (kk * 2 + T) * 4
            for k in range(4):
                a("v_dot2_f32_bf16 v%d, v%d, v43, %s" % (46 + T, r + k, "0" if first else "v%d" % (46 + T)))
                first = False
    a.nop(4)
    a("v_lshlrev_b32 v45, 2, v1")
    a("s_lshl_b32 s19, s3, 9")
    a("v_add_u32 v45, s19, v45")
    a("ds_write_b32 v45, v46 offset:40960")
    a("ds_write_b32 v45, v47 offset:41216")
    a("s_waitcnt lgkmcnt(0)")
    a("s_barrier")
    a("v_cmp_gt_u32 vcc, 32, v0")
    a("s_and_saveexec_b64 s[22:23], vcc")
    a("s_cbranch_execz L_prep_w1_end")
    a("v_bfe_u32 v48, v0, 4, 1")
    a("v_lshlrev_b32 v48, 8, v48")
    a("v_lshl_add_u32 v48, v2, 2, v48")
    for w in range(4):
        for g in range(4):
            a("ds_read_b32 v%d, v48 offset:%d" % (50 + w * 4 + g, 40960 + w * 512 + g * 64))
    a("s_waitcnt lgkmcnt(0)")
    for k in range(1, 16):
        a("v_add_f32 v50, v50, v%d" % (50 + k))
    a("v_lshlrev_b32 v49, 2, v0")
    a("s_lshl_b32 s19, s16, 7")
    a("s_add_u32 s19, s19, 0x%x" % CS)
    a("buffer_store_dword v50, v49, s[4:7], s19 offen")
    a.label("L_prep_w1_end")
    a("s_endpgm")

    a.label("L_prep_w2")
    a("s_load_dwordx2 s[14:15], s[0:1], 72")
    a("s_sub_u32 s16, s2, 440")
    a("s_lshr_b32 s17, s16, 3")
    a("s_and_b32 s18, s16, 7")
    a("s_waitcnt lgkmcnt(0)")
    a.srd(4, 12, WS_SIZE)
    a.srd(8, 14, 512 * 1792 * 2)
    a("v_lshrrev_b32 v5, 3, v0")
    a("v_and_b32 v6, 7, v0")
    a("v_lshlrev_b32 v7, 10, v5")
    a("v_lshl_add_u32 v7, v6, 4, v7")
    a("s_lshl_b32 s19, s17, 17")
    a("s_lshl_b32 s20, s18, 7")
    a("s_add_u32 s19, s19, s20")
    for e in range(4):
        a("buffer_load_dwordx4 v[%d:%d], v7, s[8:11], s19 offen" % (8 + 4 * e, 11 + 4 * e))
        if e < 3:
            a("s_add_u32 s19, s19, 32768")
    a("v_mul_u32_u24 v40, 144, v5")
    a("v_lshl_add_u32 v40, v6, 4, v40")
    for e in range(4):
        a("s_waitcnt vmcnt(%d)" % (3 - e))
        a("ds_write_b128 v40, v[%d:%d] offset:%d" % (8 + 4 * e, 11 + 4 * e, e * 4608))
    a("s_waitcnt lgkmcnt(0)")
    a("s_barrier")
    a("v_lshrrev_b32 v41, 2, v2")
    a("v_lshl_add_u32 v41, v3, 2, v41")
    a("v_mul_u32_u24 v41, 144, v41")
    a("v_and_b32 v42, 3, v2")
    a("v_lshl_add_u32 v41, v42, 3, v41")
    a("s_mul_i32 s19, s3, 4608")
    a("v_add_u32 v41, s19, v41")
    for Dt in range(4):
        for rho in range(2):
            r = 8 + Dt * 4 + rho * 2
            a("ds_read_b64_tr_b16 v[%d:%d], v41 offset:%d" % (r, r + 1, rho * 2304 + Dt * 32))
    a("v_lshlrev_b32 v44, 4, v1")
    a("s_lshl_b32 s19, s3, 12")
    a("v_add_u32 v44, s19, v44")
    a("s_mul_i32 s19, s18, 56")
    a("s_lshl_b32 s20, s17, 2")
    a("s_add_u32 s19, s19, s20")
    a("s_lshl_b32 s19, s19, 12")
    a("s_add_u32 s19, s19, 0x%x" % W2F)
    a("s_waitcnt lgkmcnt(0)")
    for Dt in range(4):
        r = 8 + Dt * 4
        a("buffer_store_dwordx4 v[%d:%d], v44, s[4:7], s19 offen offset:%d" % (r, r + 3, Dt * 1024))
    a("s_endpgm")

    PRM = 0
    BT = 4096
    TB = 4352
    TBS = 9728
    a.label("L_prep_kg")
    a("s_load_dwordx4 s[16:19], s[0:1], 8")
    a("s_load_dwordx4 s[20:23], s[0:1], 24")
    a("s_load_dwordx2 s[24:25], s[0:1], 40")
    a("s_waitcnt lgkmcnt(0)")
    a.srd(4, 12, WS_SIZE)
    a.srd(28, 16, 131072)
    a.srd(32, 18, 131072)
    a.srd(36, 20, 131072)
    a.srd(40, 22, 131072)
    a.srd(44, 24, 1024)
    a("v_lshlrev_b32 v5, 1, v0")
    a("s_lshl_b32 s26, s2, 9")
    a("buffer_load_ushort v8, v5, s[28:31], s26 offen")
    a("buffer_load_ushort v9, v5, s[32:35], s26 offen")
    a("buffer_load_ushort v10, v5, s[36:39], s26 offen")
    a("buffer_load_ushort v11, v5, s[40:43], s26 offen")
    a("v_lshrrev_b32 v6, 7, v0")
    a("v_lshlrev_b32 v6, 1, v6")
    a("s_lshl_b32 s27, s2, 2")
    a("buffer_load_ushort v12, v6, s[44:47], s27 offen")
    a("v_and_b32 v13, 7, v0")
    a("v_lshrrev_b32 v14, 3, v0")
    a("v_lshl_add_u32 v13, v14, 7, v13")
    a("v_and_b32 v14, 3, v0")
    a("v_lshlrev_b32 v14, 1, v14")
    a("v_subrev_u32 v15, 16, v0")
    a("v_lshrrev_b32 v15, 2, v15")
    a("v_lshl_add_u32 v14, v15, 7, v14")
    a("v_add_u32 v14, 0x100, v14")
    a("v_cmp_le_u32 vcc, 16, v0")
    a.nop(2)
    a("v_cndmask_b32 v13, v13, v14, vcc")
    a("v_and_b32 v14, 1, v0")
    a("v_lshlrev_b32 v14, 2, v14")
    a("v_subrev_u32 v15, 24, v0")
    a("v_lshrrev_b32 v15, 1, v15")
    a("v_lshl_add_u32 v14, v15, 7, v14")
    a("v_add_u32 v14, 0x200, v14")
    a("v_cmp_le_u32 vcc, 24, v0")
    a.nop(2)
    a("v_cndmask_b32 v13, v13, v14, vcc")
    a("v_subrev_u32 v15, 32, v0")
    a("v_lshlrev_b32 v14, 7, v15")
    a("v_add_u32 v14, 0x400, v14")
    a("v_cmp_le_u32 vcc, 32, v0")
    a.nop(2)
    a("v_cndmask_b32 v13, v13, v14, vcc")
    a("v_mov_b32 v14, 0x900")
    a("v_cmp_lt_u32 vcc, 40, v0")
    a.nop(2)
    a("v_cndmask_b32 v13, v13, v14, vcc")
    a("v_lshlrev_b32 v14, 2, v0")
    a("v_cmp_gt_u32 vcc, 48, v0")
    a("s_and_saveexec_b64 s[48:49], vcc")
    a("ds_write_b32 v14, v13 offset:%d" % BT)
    a("s_mov_b64 exec, s[48:49]")
    a("s_mov_b32 s26, 0x%x" % LOG2E)
    a("s_mov_b32 s27, 0x%x" % INV2PI)
    a("s_waitcnt vmcnt(0)")
    for r in range(8, 13):
        a("v_lshlrev_b32 v%d, 16, v%d" % (r, r))
    a("v_mul_f32 v12, s26, v12")
    a("v_mul_f32 v8, s26, v8")
    a("v_exp_f32 v12, v12")
    a("v_exp_f32 v8, v8")
    a.nop(1)
    a.bfr(12, 12)
    a.bfr(8, 8)
    a("v_mul_f32 v8, v8, v12")
    a("v_mul_f32 v9, v9, v12")
    a("v_mul_f32 v10, v10, v12")
    a("v_mul_f32 v11, v11, v12")
    a("v_mul_f32 v16, s26, v8")
    a("v_sub_f32 v16, 0, v16")
    a("v_mul_f32 v17, s27, v9")
    a("v_add_f32 v18, v10, v10")
    a("v_add_f32 v19, v11, v11")
    a("v_lshlrev_b32 v14, 4, v0")
    a("ds_write_b128 v14, v[16:19] offset:%d" % PRM)
    a("s_waitcnt lgkmcnt(0)")
    a("s_barrier")
    a("v_lshlrev_b32 v14, 2, v2")
    for t in range(3):
        a("ds_read_b32 v%d, v14 offset:%d" % (20 + t, BT + 64 * t))
    a("v_lshlrev_b32 v23, 3, v2")
    a("v_cvt_f32_u32 v23, v23")
    a("v_lshlrev_b32 v24, 4, v3")
    a("s_lshl_b32 s26, s3, 10")
    a("v_add_u32 v24, s26, v24")
    a("ds_read_b128 v[28:31], v24 offset:%d" % PRM)
    for r in range(64, 76):
        a("v_mov_b32 v%d, 0" % r)
    a("s_waitcnt lgkmcnt(1)")
    for t in range(3):
        a("v_cvt_f32_u32 v%d, v%d" % (20 + t, 20 + t))
    for q in range(16):
        P = 28 + 4 * (q % 2)
        Pn = 28 + 4 * ((q + 1) % 2)
        a("s_waitcnt lgkmcnt(0)")
        if q < 15:
            a("ds_read_b128 v[%d:%d], v24 offset:%d" % (Pn, Pn + 3, PRM + (q + 1) * 64))
        for k in range(4):
            a("v_mul_f32 v%d, v%d, v%d" % (36 + k, P, 20 + k))
            a("v_mul_f32 v%d, v%d, v%d" % (40 + k, P + 1, 20 + k))
        for k in range(4):
            a("v_exp_f32 v%d, v%d" % (36 + k, 36 + k))
            a("v_fract_f32 v%d, v%d" % (40 + k, 40 + k))
        for k in range(4):
            a("v_sin_f32 v%d, v%d" % (44 + k, 40 + k))
            a("v_cos_f32 v%d, v%d" % (48 + k, 40 + k))
        a.nop(1)
        for k in range(4):
            a("v_mul_f32 v%d, v%d, v%d" % (44 + k, 36 + k, 44 + k))
            a("v_mul_f32 v%d, v%d, v%d" % (48 + k, 36 + k, 48 + k))
        for t in range(3):
            a("v_mul_f32 v%d, v%d, v%d" % (52 + t, P + 3, 44 + t))
            a("v_mul_f32 v%d, v%d, v%d" % (56 + t, P + 3, 48 + t))
        for t in range(3):
            a("v_fma_f32 v%d, v%d, v%d, -v%d" % (52 + t, P + 2, 48 + t, 52 + t))
            a("v_fma_f32 v%d, -v%d, v%d, -v%d" % (56 + t, P + 2, 44 + t, 56 + t))
        a.nop(2)
        for t in range(3):
            a("v_mfma_f32_16x16x4_f32 v[%d:%d], v%d, v51, v[%d:%d]" % (64 + 4 * t, 67 + 4 * t, 52 + t, 64 + 4 * t, 67 + 4 * t))
        for t in range(3):
            a("v_mfma_f32_16x16x4_f32 v[%d:%d], v%d, v47, v[%d:%d]" % (64 + 4 * t, 67 + 4 * t, 56 + t, 64 + 4 * t, 67 + 4 * t))
    a("v_lshlrev_b32 v14, 4, v3")
    for t in range(3):
        a("ds_read_b128 v[%d:%d], v14 offset:%d" % (80 + 4 * t, 83 + 4 * t, BT + 64 * t))
    a("v_lshlrev_b32 v15, 5, v2")
    a("s_lshr_b32 s26, s3, 1")
    a("s_mul_i32 s26, s26, %d" % TBS)
    a("s_add_u32 s26, s26, %d" % TB)
    a("v_add_u32 v15, s26, v15")
    a("s_waitcnt lgkmcnt(0)")
    for k in range(12):
        a("v_lshl_add_u32 v%d, v%d, 2, v15" % (80 + k, 80 + k))
    a.nop(12)
    a("s_and_b32 s27, s3, 1")
    a("s_cmp_eq_u32 s27, 0")
    a("s_cbranch_scc1 L_prep_kg_a")
    for k in range(12):
        a("ds_write_b32 v%d, v%d" % (80 + k, 64 + k))
    a("s_waitcnt lgkmcnt(0)")
    a("s_barrier")
    a("s_barrier")
    a("s_branch L_prep_kg_b")
    a.label("L_prep_kg_a")
    a("s_barrier")
    for k in range(12):
        a("ds_read_b32 v%d, v%d" % (96 + k, 80 + k))
    a("s_waitcnt lgkmcnt(0)")
    for k in range(12):
        a("v_add_f32 v%d, v%d, v%d" % (96 + k, 96 + k, 64 + k))
    for k in range(12):
        a("ds_write_b32 v%d, v%d" % (80 + k, 96 + k))
    a("s_waitcnt lgkmcnt(0)")
    a("s_barrier")
    a.label("L_prep_kg_b")
    a("v_and_b32 v5, 127, v0")
    a("v_lshlrev_b32 v6, 4, v5")
    a("v_sub_u32 v6, 0x7ff, v6")
    a("v_lshrrev_b32 v7, 7, v0")
    a("s_movk_i32 s26, %d" % TBS)
    a("v_mul_lo_u32 v7, v7, s26")
    a("v_add_u32 v7, %d, v7" % TB)
    for k in range(16):
        a("v_subrev_u32 v%d, %d, v6" % (16 + k, k))
        a("v_cvt_f32_u32 v%d, v%d" % (16 + k, 16 + k))
    for k in range(16):
        a.bfr(16 + k, 16 + k)
    for k in range(16):
        a("v_cvt_u32_f32 v%d, v%d" % (16 + k, 16 + k))
        a("v_lshl_add_u32 v%d, v%d, 2, v7" % (16 + k, 16 + k))
    for k in range(16):
        a("ds_read_b32 v%d, v%d" % (32 + k, 16 + k))
    a("s_waitcnt lgkmcnt(0)")
    for k in range(8):
        a("v_cvt_pk_bf16_f32 v%d, v%d, v%d" % (48 + k, 32 + 2 * k, 33 + 2 * k))
    a("v_lshrrev_b32 v7, 7, v0")
    a("s_movk_i32 s26, %d" % KSTRIDE)
    a("v_mul_lo_u32 v7, v7, s26")
    a("v_lshl_add_u32 v8, v5, 5, v7")
    a("s_mul_i32 s26, s2, %d" % (2 * KSTRIDE))
    a("s_add_u32 s26, s26, 0x%x" % KREV)
    a("buffer_store_dwordx4 v[48:51], v8, s[4:7], s26 offen")
    a("buffer_store_dwordx4 v[52:55], v8, s[4:7], s26 offen offset:16")
    for k in range(4):
        a("v_mov_b32 v%d, 0" % (56 + k))
    a("v_lshl_add_u32 v8, v5, 4, v7")
    a("v_cmp_gt_u32 vcc, 8, v5")
    a("s_and_saveexec_b64 s[48:49], vcc")
    a("s_cbranch_execz L_prep_kg_end")
    a("s_add_u32 s26, s26, 4096")
    a("buffer_store_dwordx4 v[56:59], v8, s[4:7], s26 offen")
    a.label("L_prep_kg_end")
    a("s_endpgm")
    return a.text(), kernel_desc(name, 128)
```

```python
from asmlib import *
from gen_prep import *

EPS = 0x3727c5ac

def emit_ln_scalars(a, S, Q, M, RS, SB, t0):
    a("v_mul_f32 v%d, 0x3b000000, v%d" % (S, S))
    a("v_mul_f32 v%d, 0x3b000000, v%d" % (Q, Q))
    a("v_fma_f32 v%d, -v%d, v%d, v%d" % (Q, S, S, Q))
    a("v_max_f32 v%d, 0, v%d" % (Q, Q))
    a.bfr(M, S)
    a.bfr(Q, Q)
    a("v_add_f32 v%d, 0x%x, v%d" % (Q, EPS, Q))
    a.bfr(Q, Q)
    a("v_sqrt_f32 v%d, v%d" % (Q, Q))
    a.nop(1)
    a.bfr(SB, Q)
    a("v_rcp_f32 v%d, v%d" % (RS, SB))

def emit_ln_scalars_multi(a, items):
    for (S, Q, M, RS, SB) in items:
        a("v_mul_f32 v%d, 0x3b000000, v%d" % (S, S))
        a("v_mul_f32 v%d, 0x3b000000, v%d" % (Q, Q))
    for (S, Q, M, RS, SB) in items:
        a("v_fma_f32 v%d, -v%d, v%d, v%d" % (Q, S, S, Q))
    for (S, Q, M, RS, SB) in items:
        a("v_max_f32 v%d, 0, v%d" % (Q, Q))
    for (S, Q, M, RS, SB) in items:
        a("v_cvt_pk_bf16_f32 v%d, v%d, v%d" % (Q, Q, S))
    for (S, Q, M, RS, SB) in items:
        a("v_and_b32 v%d, 0xffff0000, v%d" % (M, Q))
        a("v_lshlrev_b32 v%d, 16, v%d" % (Q, Q))
    for (S, Q, M, RS, SB) in items:
        a("v_add_f32 v%d, 0x%x, v%d" % (Q, EPS, Q))
    for (S, Q, M, RS, SB) in items:
        a("v_cvt_pk_bf16_f32 v%d, v%d, v%d" % (Q, Q, Q))
    for (S, Q, M, RS, SB) in items:
        a("v_lshlrev_b32 v%d, 16, v%d" % (Q, Q))
    for (S, Q, M, RS, SB) in items:
        a("v_sqrt_f32 v%d, v%d" % (Q, Q))
    a.nop(1)
    for (S, Q, M, RS, SB) in items:
        a("v_cvt_pk_bf16_f32 v%d, v%d, v%d" % (SB, Q, Q))
    for (S, Q, M, RS, SB) in items:
        a("v_lshlrev_b32 v%d, 16, v%d" % (SB, SB))
    for (S, Q, M, RS, SB) in items:
        a("v_rcp_f32 v%d, v%d" % (RS, SB))
    a.nop(1)

def gen_conv(name, XIN, XOUT, ST, slot=0):
    a = Asm()
    a.raw(kernel_header(name))
    UB = 512; US = 4608
    XS = 9728; XSS = 4096
    SCR = 17920
    KC = 34304; CSTR = 4256; KCS = 8 * CSTR
    a("s_cmp_ge_u32 s2, 256")
    a("s_cbranch_scc1 L_%s_end" % name)
    a("s_load_dwordx2 s[12:13], s[0:1], 96")
    a("s_load_dwordx2 s[14:15], s[0:1], 48")
    common_ids(a)
    a("s_waitcnt lgkmcnt(0)")
    a.srd(4, 12, WS_SIZE)
    a.srd(8, 14, 1024)
    a.stamp()
    a("v_lshlrev_b32 v5, 6, v0")
    a("v_lshlrev_b32 v6, 4, v0")
    a("s_mov_b32 s16, 0x%x" % ST)
    ist = []
    for k in range(4):
        ist.append(a.vmem("buffer_load_dwordx4 v[%d:%d], v5, s[4:7], s16 offen offset:%d" % (64 + 4 * k, 67 + 4 * k, 16 * k)))
    a("s_mul_i32 s17, s2, %d" % (2 * XTS))
    a("s_add_u32 s18, s17, 0x%x" % XIN)
    a("s_add_u32 s19, s18, %d" % XTS)
    ix0 = a.vmem("buffer_load_dwordx4 v[32:35], v6, s[4:7], s18 offen")
    ix1 = a.vmem("buffer_load_dwordx4 v[36:39], v6, s[4:7], s19 offen")
    a("s_mul_i32 s20, s2, %d" % (2 * KSTRIDE))
    a("s_add_u32 s20, s20, 0x%x" % KREV)
    a("s_add_u32 s21, s20, %d" % KSTRIDE)
    a.vmem("buffer_load_dwordx4 v[40:43], v6, s[4:7], s20 offen")
    ik0 = a.vmem("buffer_load_dwordx4 v[44:47], v6, s[4:7], s20 offen offset:16")
    a.vmem("buffer_load_dwordx4 v[48:51], v6, s[4:7], s21 offen")
    ik1 = a.vmem("buffer_load_dwordx4 v[52:55], v6, s[4:7], s21 offen offset:16")
    a("s_lshl_b32 s22, s2, 2")
    a("v_mov_b32 v8, 0")
    idk = a.vmem("buffer_load_dword v56, v8, s[8:11], s22 offen")
    for k in range(4):
        a("v_mov_b32 v%d, 0" % (12 + k))
    a("v_mul_u32_u24 v7, %d, v0" % CSTR)
    a("v_cmp_gt_u32 vcc, 32, v0")
    a("s_and_saveexec_b64 s[24:25], vcc")
    a("ds_write_b128 v6, v[12:15] offset:%d" % UB)
    a("ds_write_b128 v6, v[12:15] offset:%d" % (UB + US))
    a("v_cmp_gt_u32 vcc, 16, v0")
    a("s_and_b64 exec, exec, vcc")
    a("ds_write_b128 v7, v[12:15] offset:%d" % (KC + 4096))
    a("s_mov_b64 exec, s[24:25]")
    a.wait_vm(ist[3])
    emit_ln_scalars_multi(a, [(64 + 2 * l, 65 + 2 * l, 200 + l, 208 + l, 216 + l) for l in range(8)])
    a.stamp()
    a.wait_vm(ix1)
    a("ds_write_b128 v6, v[32:35] offset:%d" % XS)
    a("ds_write_b128 v6, v[36:39] offset:%d" % (XS + XSS))
    for ch in range(2):
        xb = 32 + 4 * ch
        T = 16 + 0; Qr = 24
        for l in range(8):
            src = xb + l // 2
            d = T + l
            if l % 2 == 0:
                a("v_lshlrev_b32 v%d, 16, v%d" % (d, src))
            else:
                a("v_and_b32 v%d, 0xffff0000, v%d" % (d, src))
        for l in range(8):
            a("v_sub_f32 v%d, v%d, v%d" % (T + l, T + l, 200 + l))
        for k in range(4):
            a("v_cvt_pk_bf16_f32 v%d, v%d, v%d" % (Qr + k, T + 2 * k, T + 2 * k + 1))
        for l in range(8):
            if l % 2 == 0:
                a("v_lshlrev_b32 v%d, 16, v%d" % (T + l, Qr + l // 2))
            else:
                a("v_and_b32 v%d, 0xffff0000, v%d" % (T + l, Qr + l // 2))
        for l in range(8):
            a("v_mul_f32 v%d, v%d, v%d" % (Qr + l, T + l, 208 + l))
        for l in range(8):
            a("v_fma_f32 v%d, -v%d, v%d, v%d" % (T + l, Qr + l, 216 + l, T + l))
        for l in range(8):
            a("v_fma_f32 v%d, v%d, v%d, v%d" % (Qr + l, T + l, 208 + l, Qr + l))
        for k in range(4):
            a("v_cvt_pk_bf16_f32 v%d, v%d, v%d" % (12 + k, Qr + 2 * k, Qr + 2 * k + 1))
        a("ds_write_b128 v6, v[12:15] offset:%d" % (UB + ch * US + 512))
    a("v_add_u32 v7, %d, v6" % KC)
    for ch in range(2):
        kb = 40 + 8 * ch
        a.wait_vm(ik0 if ch == 0 else ik1)
        if ch == 1:
            a("v_add_u32 v7, %d, v7" % KCS)
        for s in range(8):
            o = s // 2
            if s in (0, 4):
                a("ds_write_b128 v7, v[%d:%d] offset:%d" % (kb + o, kb + o + 3, s * CSTR))
            else:
                t = 80 + 4 * s
                for k in range(4):
                    if s % 2 == 0:
                        a("v_mov_b32 v%d, v%d" % (t + k, kb + o + k))
                    else:
                        a("v_alignbit_b32 v%d, v%d, v%d, 16" % (t + k, kb + o + k + 1, kb + o + k))
                a("ds_write_b128 v7, v[%d:%d] offset:%d" % (t, t + 3, s * CSTR))
    a("s_lshr_b32 s26, s3, 1")
    a("s_and_b32 s27, s3, 1")
    a("s_lshl_b32 s29, s27, 8")
    a("v_and_b32 v9, 7, v2")
    a("v_sub_u32 v9, 7, v9")
    a("v_mul_u32_u24 v9, %d, v9" % CSTR)
    a("v_lshrrev_b32 v10, 3, v2")
    a("v_sub_u32 v10, v3, v10")
    a("v_lshl_add_u32 v9, v10, 4, v9")
    a("s_mul_i32 s28, s26, %d" % KCS)
    a("s_add_u32 s28, s28, %d" % (KC + 16 + 256))
    a("s_sub_u32 s28, s28, s29")
    a("v_add_u32 v9, s28, v9")
    a("v_lshlrev_b32 v10, 5, v2")
    a("v_lshl_add_u32 v10, v3, 4, v10")
    a("s_mul_i32 s28, s26, %d" % US)
    a("s_add_u32 s28, s28, %d" % (UB + 32))
    a("s_sub_u32 s28, s28, s29")
    a("v_add_u32 v10, s28, v10")
    ACC = 64
    for r in range(32):
        a("v_accvgpr_write_b32 a%d, 0" % r)
    a("s_waitcnt lgkmcnt(0)")
    a.stamp()
    a("s_barrier")
    a.stamp()
    a.lg = 0
    AF = [96, 160]; BF = [128, 192]
    def issue_parts(e):
        buf = e % 2
        parts = []
        for k in range(8):
            parts.append(lambda k=k: a.lds("ds_read_b128 v[%d:%d], v10 offset:%d" % (BF[buf] + 4 * k, BF[buf] + 4 * k + 3, 512 * k + 32 * (14 - 2 * e))))
            parts.append(lambda k=k: a.lds("ds_read_b128 v[%d:%d], v9 offset:%d" % (AF[buf] + 4 * k, AF[buf] + 4 * k + 3, 512 * (7 - k) + 64 * (3 - e))))
        return parts
    for f in issue_parts(0): f()
    for e in range(4):
        buf = e % 2
        a("s_waitcnt lgkmcnt(0)")
        parts = issue_parts(e + 1) if e < 3 else []
        k = 0
        for c1 in range(8):
            for J in range(c1, 8):
                a("v_mfma_f32_16x16x32_bf16 a[%d:%d], v[%d:%d], v[%d:%d], a[%d:%d]" % (
                    4 * J, 4 * J + 3, AF[buf] + 4 * c1, AF[buf] + 4 * c1 + 3,
                    BF[buf] + 4 * (J - c1), BF[buf] + 4 * (J - c1) + 3, 4 * J, 4 * J + 3))
                k += 1
                if k % 2 == 0 and parts: parts.pop(0)()
        assert not parts
    a.stamp()
    a("v_lshlrev_b32 v11, 4, v1")
    a("s_lshl_b32 s28, s3, 12")
    a("v_add_u32 v12, s28, v11")
    a("s_xor_b32 s28, s3, 1")
    a("s_lshl_b32 s28, s28, 12")
    a("v_add_u32 v13, s28, v11")
    a("v_lshlrev_b32 v14, 5, v2")
    a("v_lshl_add_u32 v14, v3, 3, v14")
    a("s_lshl_b32 s28, s27, 11")
    a("v_add_u32 v14, s28, v14")
    a("s_mul_i32 s28, s26, %d" % US)
    a("v_add_u32 v15, s28, v14")
    a("s_lshl_b32 s28, s26, 12")
    a("v_add_u32 v16, s28, v14")
    a("s_mul_i32 s28, s26, %d" % XTS)
    a("v_add_u32 v17, s28, v14")
    for Jl in range(4):
        a("ds_read_b64 v[%d:%d], v15 offset:%d" % (32 + 2 * Jl, 33 + 2 * Jl, UB + 512 + 512 * Jl))
        a("ds_read_b64 v[%d:%d], v16 offset:%d" % (40 + 2 * Jl, 41 + 2 * Jl, XS + 512 * Jl))
    a("s_cmp_eq_u32 s27, 0")
    a("s_cbranch_scc1 L_%s_h0" % name)
    for Jl in range(4):
        a("ds_write_b128 v12, a[%d:%d] offset:%d" % (4 * Jl, 4 * Jl + 3, SCR + 1024 * Jl))
    for r in range(16):
        a("v_accvgpr_read_b32 v%d, a%d" % (ACC + r, 16 + r))
    a("s_branch L_%s_h1" % name)
    a.label("L_%s_h0" % name)
    for Jl in range(4):
        a("ds_write_b128 v12, a[%d:%d] offset:%d" % (16 + 4 * Jl, 16 + 4 * Jl + 3, SCR + 1024 * Jl))
    for r in range(16):
        a("v_accvgpr_read_b32 v%d, a%d" % (ACC + r, r))
    a.label("L_%s_h1" % name)
    a("s_waitcnt lgkmcnt(0)")
    a("s_barrier")
    for Jl in range(4):
        a("ds_read_b128 v[%d:%d], v13 offset:%d" % (96 + 4 * Jl, 99 + 4 * Jl, SCR + 1024 * Jl))
    a("s_waitcnt vmcnt(0)")
    a("v_lshlrev_b32 v57, 16, v56")
    a("v_and_b32 v58, 0xffff0000, v56")
    a("s_cmp_eq_u32 s26, 0")
    a("s_cbranch_scc1 L_%s_c0" % name)
    a("v_mov_b32 v57, v58")
    a.label("L_%s_c0" % name)
    a("s_waitcnt lgkmcnt(0)")
    a("s_add_u32 s18, s17, 0x%x" % XOUT)
    for Jl in range(4):
        for i in range(4):
            y = ACC + 4 * Jl + i
            a("v_add_f32 v%d, v%d, v%d" % (y, y, 96 + 4 * Jl + i))
            us = 32 + 2 * Jl + i // 2
            xs = 40 + 2 * Jl + i // 2
            if i % 2 == 0:
                a("v_lshlrev_b32 v%d, 16, v%d" % (20 + i, us))
                a("v_lshlrev_b32 v%d, 16, v%d" % (24 + i, xs))
            else:
                a("v_and_b32 v%d, 0xffff0000, v%d" % (20 + i, us))
                a("v_and_b32 v%d, 0xffff0000, v%d" % (24 + i, xs))
            a("v_mul_f32 v%d, v%d, v57" % (20 + i, 20 + i))
        for i in range(4):
            a.bfr(ACC + 4 * Jl + i, ACC + 4 * Jl + i)
            a.bfr(20 + i, 20 + i)
        for i in range(4):
            a("v_add_f32 v%d, v%d, v%d" % (20 + i, 20 + i, ACC + 4 * Jl + i))
        for i in range(4):
            a.bfr(20 + i, 20 + i)
        for i in range(4):
            a("v_add_f32 v%d, v%d, v%d" % (20 + i, 20 + i, 24 + i))
        a("v_cvt_pk_bf16_f32 v%d, v20, v21" % (48 + 2 * Jl))
        a("v_cvt_pk_bf16_f32 v%d, v22, v23" % (49 + 2 * Jl))
        a("buffer_store_dwordx2 v[%d:%d], v17, s[4:7], s18 offen offset:%d sc1" % (48 + 2 * Jl, 49 + 2 * Jl, 512 * Jl))
    a("s_cmp_lg_u32 s2, 0")
    a("s_cbranch_scc1 L_%s_nf" % name)
    a("v_mov_b32 v8, 0")
    a("s_mov_b32 s20, 0x%x" % FLG)
    a("buffer_load_dword v9, v8, s[4:7], s20 offen")
    a("s_waitcnt vmcnt(0)")
    a("buffer_store_dword v9, v8, s[4:7], s20 offen offset:4")
    a.label("L_%s_nf" % name)
    a.stamp_flush(slot)
    a.label("L_%s_end" % name)
    a("s_endpgm")
    return a.text(), kernel_desc(name, 224, agpr=32), KC + 2 * KCS
```

```python
from asmlib import *
from gen_prep import *
from gen_conv import emit_ln_scalars, emit_ln_scalars_multi

def gen_gemm1(name, XIN, slot=1):
    a = Asm()
    a.raw(kernel_header(name))
    STL = 131072
    a("s_cmp_ge_u32 s2, 224")
    a("s_cbranch_scc1 L_%s_end" % name)
    a("s_load_dwordx2 s[12:13], s[0:1], 96")
    common_ids(a)
    a("s_and_b32 s16, s2, 7")
    a("s_lshl_b32 s16, s16, 1")
    a("s_bfe_u32 s17, s2, 0x10003")
    a("s_add_u32 s16, s16, s17")
    a("s_lshr_b32 s17, s2, 4")
    for e in range(2):
        a("v_add_u32 v7, %d, v3" % (4 * e))
        a("v_lshlrev_b32 v8, 1, v7")
        a("v_xor_b32 v8, v8, v2")
        a("v_lshlrev_b32 v8, 4, v8")
        a("v_mul_u32_u24 v7, %d, v7" % XTS)
        a("v_add_u32 v%d, v7, v8" % (5 + e))
    a("s_mul_i32 s18, s3, %d" % (8 * XTS))
    a("s_lshl_b32 s19, s16, 8")
    a("s_add_u32 s18, s18, s19")
    a("s_add_u32 s18, s18, 0x%x" % XIN)
    a("s_lshl_b32 s20, s3, 11")
    a("v_lshlrev_b32 v9, 4, v1")
    a("s_lshl_b32 s21, s17, 2")
    a("s_add_u32 s21, s21, s3")
    a("s_mov_b32 s24, s21")
    a("s_lshl_b32 s21, s21, 15")
    a("s_add_u32 s21, s21, 0x%x" % W1F)
    a("v_lshlrev_b32 v10, 4, v3")
    a("s_lshl_b32 s22, s24, 7")
    a("s_add_u32 s22, s22, 0x%x" % CS)
    a("s_waitcnt lgkmcnt(0)")
    a.srd(4, 12, WS_SIZE)
    a.stamp()
    CSR = 240
    LOOK = 5
    WR = 168
    NW = 6
    last = {}
    def issue_parts(ks):
        def dma(e):
            def f():
                a("s_add_u32 s23, s20, %d" % (ks * 8192 + e * 1024))
                a("s_mov_b32 m0, s23")
                a.nop(1)
                a.vmem("buffer_load_dwordx4 v%d, s[4:7], s18 offen lds" % (5 + e))
                if e == 1:
                    a("s_add_u32 s18, s18, %d" % (32 * XTS))
            return f
        w = WR + (ks % NW) * 8
        def w0():
            a.vmem("buffer_load_dwordx4 v[%d:%d], v9, s[4:7], s21 offen" % (w, w + 3))
        def w1():
            last[ks] = a.vmem("buffer_load_dwordx4 v[%d:%d], v9, s[4:7], s21 offen offset:1024" % (w + 4, w + 7))
            a("s_add_u32 s21, s21, 2048")
        return [dma(0), dma(1), w0, w1]
    for ks in range(LOOK):
        for f in issue_parts(ks): f()
    a.vmem("buffer_load_dwordx4 v[%d:%d], v10, s[4:7], s22 offen" % (CSR, CSR + 3))
    a.vmem("buffer_load_dwordx4 v[%d:%d], v10, s[4:7], s22 offen offset:64" % (CSR + 4, CSR + 7))
    a("s_cmp_gt_u32 s2, 16")
    a("s_cbranch_scc1 L_%s_nz" % name)
    a("v_mov_b32 v40, 0")
    a("v_lshlrev_b32 v41, 2, v0")
    a("s_lshl_b32 s25, s2, 10")
    a("s_add_u32 s25, s25, 0x%x" % ST0)
    a("s_cmp_eq_u32 s2, 16")
    a("s_cbranch_scc0 L_%s_zs" % name)
    a("v_mov_b32 v40, 1")
    a("v_mov_b32 v41, 0")
    a("s_mov_b32 s25, 0x%x" % FLG)
    a.label("L_%s_zs" % name)
    a("buffer_store_dword v40, v41, s[4:7], s25 offen")
    a("s_waitcnt vmcnt(0)")
    a.label("L_%s_nz" % name)
    a("v_lshrrev_b32 v20, 2, v2")
    a("v_and_b32 v21, 3, v2")
    a("v_lshl_add_u32 v22, v3, 2, v20")
    a("v_and_b32 v23, 7, v22")
    a("v_lshlrev_b32 v22, 8, v22")
    a("v_and_b32 v24, 1, v21")
    a("v_lshl_add_u32 v22, v24, 3, v22")
    a("v_lshrrev_b32 v24, 1, v21")
    a("s_lshl_b32 s26, s3, 1")
    for lam in range(8):
        a("s_add_u32 s25, s26, %d" % lam)
        a("s_and_b32 s25, s25, 7")
        a("v_xor_b32 v25, s25, v23")
        a("v_lshl_add_u32 v25, v25, 1, v24")
        a("v_lshl_add_u32 v%d, v25, 4, v22" % (12 + lam))
    BF = [96, 128]
    for r in range(80):
        a("v_accvgpr_write_b32 a%d, 0" % r)
    a("s_mov_b32 s25, 0x%x" % ONES_BF)
    for r in range(4):
        a("v_mov_b32 v%d, s25" % (160 + r))
    def rd_parts(ks):
        buf = ks % 2
        parts = []
        if ks == 8:
            def bump():
                for lam in range(8):
                    a("v_add_u32 v%d, 0x10000, v%d" % (12 + lam, 12 + lam))
            parts.append(bump)
        for lam in range(8):
            for rho in range(2):
                r = BF[buf] + 4 * lam + 2 * rho
                parts.append(lambda r=r, lam=lam, rho=rho: a.lds("ds_read_b64_tr_b16 v[%d:%d], v%d offset:%d" % (r, r + 1, 12 + lam, (ks % 8) * 8192 + rho * 4096)))
        return parts
    a.stamp()
    a.wait_vm(last[1])
    a("s_barrier")
    a.stamp()
    for f in rd_parts(0): f()
    for ks in range(16):
        buf = ks % 2
        a("s_waitcnt lgkmcnt(0)")
        rparts = []
        if ks + 1 < 16:
            if ks % 2 == 1:
                a.wait_vm(last[min(ks + 2, 15)])
                a("s_barrier")
            rparts = rd_parts(ks + 1)
        parts = issue_parts(ks + LOOK) if ks + LOOK < 16 else []
        w = WR + (ks % NW) * 8
        mf = []
        for lam in range(8):
            for T in range(2):
                c = (T * 8 + lam) * 4
                mf.append("v_mfma_f32_16x16x32_bf16 a[%d:%d], v[%d:%d], v[%d:%d], a[%d:%d]" % (
                    c, c + 3, w + 4 * T, w + 4 * T + 3, BF[buf] + 4 * lam, BF[buf] + 4 * lam + 3, c, c + 3))
        for h in range(2):
            b = BF[buf] + 4 * h
            mf.append("v_mfma_f32_16x16x32_bf16 a[%d:%d], v[160:163], v[%d:%d], a[%d:%d]" % (64 + 4 * h, 67 + 4 * h, b, b + 3, 64 + 4 * h, 67 + 4 * h))
            mf.append("v_mfma_f32_16x16x32_bf16 a[%d:%d], v[%d:%d], v[%d:%d], a[%d:%d]" % (72 + 4 * h, 75 + 4 * h, b, b + 3, b, b + 3, 72 + 4 * h, 75 + 4 * h))
        if ks == 15:
            mf = mf[16:] + mf[:16]
        for k, m in enumerate(mf):
            a(m)
            if rparts: rparts.pop(0)()
            if k % 4 == 1 and parts: parts.pop(0)()
        while rparts: rparts.pop(0)()
        assert not parts
    a.stamp()
    a("v_and_b32 v20, 3, v2")
    for h in range(2):
        a("v_accvgpr_read_b32 v%d, a%d" % (164 + 2 * h, 64 + 4 * h))
        a("v_accvgpr_read_b32 v%d, a%d" % (165 + 2 * h, 72 + 4 * h))
        for i in range(1, 4):
            a("v_accvgpr_read_b32 v21, a%d" % (72 + 4 * h + i))
            a("v_cmp_eq_u32 vcc, %d, v20" % i)
            a.nop(2)
            a("v_cndmask_b32 v%d, v%d, v21, vcc" % (165 + 2 * h, 165 + 2 * h))
    emit_ln_scalars_multi(a, [(164 + 2 * h, 165 + 2 * h, 176 + 2 * h, 177 + 2 * h, 180 + h) for h in range(2)])
    for h in range(2):
        a("v_mul_f32 v%d, v%d, v%d" % (176 + 2 * h, 176 + 2 * h, 177 + 2 * h))
    a("v_lshlrev_b32 v20, 3, v2")
    a("v_add_u32 v20, 0x%x, v20" % STL)
    a("s_lshl_b32 s25, s3, 8")
    a("v_add_u32 v21, s25, v20")
    a("v_lshrrev_b32 v22, 2, v2")
    a("v_cmp_eq_u32 vcc, v22, v3")
    a("s_and_saveexec_b64 s[26:27], vcc")
    a("ds_write_b64 v21, v[176:177] offset:%d" % 0)
    a("ds_write_b64 v21, v[178:179] offset:%d" % 128)
    a("s_mov_b64 exec, s[26:27]")
    a("s_waitcnt lgkmcnt(0)")
    a("s_barrier")
    for lam in range(8):
        a("s_lshl_b32 s25, s3, 1")
        a("s_add_u32 s25, s25, %d" % lam)
        a("s_and_b32 s25, s25, 7")
        a("s_lshl_b32 s%d, s25, 7" % (32 + lam))
        a("s_mul_i32 s%d, s25, %d" % (40 + lam, 56 * 1024))
        a("v_add_u32 v21, s%d, v20" % (32 + lam))
        a("ds_read_b64 v[%d:%d], v21" % (96 + 2 * lam, 97 + 2 * lam))
    a("s_mul_i32 s25, s16, %d" % (8 * 56))
    a("s_add_u32 s25, s25, s24")
    a("s_lshl_b32 s25, s25, 10")
    a("s_add_u32 s25, s25, 0x%x" % HB)
    for lam in range(8):
        a("s_add_u32 s%d, s%d, s25" % (40 + lam, 40 + lam))
    a("s_waitcnt vmcnt(0) lgkmcnt(0)")
    for lam in range(8):
        mr = 96 + 2 * lam; rs = mr + 1
        tb = 28 + 8 * (lam % 4)
        for T in range(2):
            c = (T * 8 + lam) * 4
            for i in range(4):
                a("v_accvgpr_read_b32 v%d, a%d" % (tb + 4 * T + i, c + i))
        for i in range(0, 8, 2):
            a("v_pk_mul_f32 v[%d:%d], v[%d:%d], v[%d:%d] op_sel_hi:[1,0]" % (tb + i, tb + i + 1, tb + i, tb + i + 1, rs - 1, rs) if False else
              "v_pk_mul_f32 v[%d:%d], v[%d:%d], v[%d:%d] op_sel:[0,1] op_sel_hi:[1,1]" % (tb + i, tb + i + 1, tb + i, tb + i + 1, mr, mr + 1))
        for i in range(0, 8, 2):
            a("v_pk_fma_f32 v[%d:%d], v[%d:%d], v[%d:%d], v[%d:%d] op_sel_hi:[1,0,1] neg_lo:[0,1,0] neg_hi:[0,1,0]" % (
                tb + i, tb + i + 1, CSR + i, CSR + i + 1, mr, mr + 1, tb + i, tb + i + 1))
        o = 128 + 4 * (lam % 4)
        for i in range(4):
            a("v_cvt_pk_bf16_f32 v%d, v%d, v%d" % (o + i, tb + 2 * i, tb + 2 * i + 1))
        for i in range(4):
            a("v_pk_max_i16 v%d, v%d, 0" % (o + i, o + i))
        a("buffer_store_dwordx4 v[%d:%d], v9, s[4:7], s%d offen" % (o, o + 3, 40 + lam))
    a.stamp_flush(slot)
    a.label("L_%s_end" % name)
    a("s_endpgm")
    return a.text(), kernel_desc(name, 248, agpr=80), 131072 + 1024

def gen_gemm2(name, XRES, XOUT, STOUT, slot=2):
    a = Asm()
    a.raw(kernel_header(name))
    RS = 272; RW = 64 * RS
    OT = 0; RB = 9216
    a("s_cmp_ge_u32 s2, 256")
    a("s_cbranch_scc1 L_%s_end" % name)
    a("s_load_dwordx2 s[12:13], s[0:1], 96")
    a("s_load_dwordx2 s[14:15], s[0:1], 80")
    common_ids(a)
    a("s_and_b32 s16, s2, 7")
    a("s_lshl_b32 s16, s16, 2")
    a("s_bfe_u32 s17, s2, 0x20003")
    a("s_add_u32 s16, s16, s17")
    a("s_lshr_b32 s17, s2, 5")
    a("v_lshlrev_b32 v5, 4, v1")
    for t in range(1, 4):
        a("v_add_u32 v%d, %d, v5" % (5 + t, t * 57344))
    a("s_mul_i32 s18, s16, %d" % (4 * 56))
    a("s_mul_i32 s19, s3, 14")
    a("s_add_u32 s18, s18, s19")
    a("s_lshl_b32 s18, s18, 10")
    a("s_add_u32 s18, s18, 0x%x" % HB)
    a("s_mul_i32 s20, s17, 56")
    a("s_add_u32 s20, s20, s19")
    a("s_lshl_b32 s20, s20, 12")
    a("s_add_u32 s20, s20, 0x%x" % W2F)
    a("v_mul_u32_u24 v9, %d, v1" % XTS)
    a("s_mul_i32 s21, s17, %d" % (64 * XTS))
    a("s_lshl_b32 s22, s16, 7")
    a("s_add_u32 s21, s21, s22")
    a("s_lshl_b32 s22, s3, 5")
    a("s_add_u32 s21, s21, s22")
    a("s_add_u32 s22, s21, 0x%x" % XRES)
    a("s_mov_b32 s31, 0x%x" % (FLG + 4))
    a("s_waitcnt lgkmcnt(0)")
    a.srd(4, 12, WS_SIZE)
    a.stamp()
    DEPTH = 7
    PRE = 3
    RING = 24
    last = {}
    def issue_parts(ks):
        b = RING + (ks % DEPTH) * 32
        parts = []
        for t in range(4):
            def fa(t=t):
                a.vmem("buffer_load_dwordx4 v[%d:%d], v%d, s[4:7], s18 offen" % (b + 4 * t, b + 4 * t + 3, 5 + t))
            parts.append(fa)
            def fb(t=t):
                last[ks] = a.vmem("buffer_load_dwordx4 v[%d:%d], v5, s[4:7], s20 offen offset:%d" % (b + 16 + 4 * t, b + 19 + 4 * t, 1024 * t))
                if t == 3:
                    a("s_add_u32 s18, s18, 1024")
                    a("s_add_u32 s20, s20, 4096")
            parts.append(fb)
        return parts
    for ks in range(PRE):
        for f in issue_parts(ks): f()
    a.vmem("buffer_load_dwordx4 v[12:15], v9, s[4:7], s22 offen")
    a.vmem("buffer_load_dwordx4 v[16:19], v9, s[4:7], s22 offen offset:16")
    a("s_buffer_load_dword s30, s[4:7], s31")
    a.srd(8, 14, 0x200000)
    for r in range(64):
        a("v_accvgpr_write_b32 a%d, 0" % r)
    a("v_mul_u32_u24 v10, %d, v2" % RS)
    a("v_lshl_add_u32 v10, v3, 4, v10")
    a("s_mul_i32 s23, s3, %d" % RW)
    a("s_add_u32 s23, s23, %d" % RB)
    a("v_add_u32 v10, s23, v10")
    a("v_mul_u32_u24 v11, %d, v1" % RS)
    a("s_lshl_b32 s23, s3, 6")
    a("v_add_u32 v11, s23, v11")
    a.stamp()
    nxt = PRE
    for ks in range(14):
        parts = []
        while nxt < 14 and nxt < ks + DEPTH and len(parts) < 16:
            parts += issue_parts(nxt); nxt += 1
        a.wait_vm(last[ks])
        if ks == 0: a.stamp()
        b = RING + (ks % DEPTH) * 32
        k = 0
        per = 1 if len(parts) > 8 else 2
        for ta in range(4):
            for tb in range(4):
                c = (ta * 4 + tb) * 4
                a("v_mfma_f32_16x16x32_bf16 a[%d:%d], v[%d:%d], v[%d:%d], a[%d:%d]" % (
                    c, c + 3, b + 4 * ta, b + 4 * ta + 3, b + 16 + 4 * tb, b + 19 + 4 * tb, c, c + 3))
                k += 1
                if k % per == 0 and parts:
                    parts.pop(0)()
                if ks == 13 and k >= 9:
                    kk = k - 9
                    ta2, tb2 = kk // 4, kk % 4
                    c2 = (ta2 * 4 + tb2) * 4
                    a("ds_write_b128 v10, a[%d:%d] offset:%d" % (c2, c2 + 3, tb2 * 16 * RS + ta2 * 64))
        assert not parts
    a.stamp()
    a.nop(4)
    for kk in range(8, 16):
        ta2, tb2 = kk // 4, kk % 4
        c2 = (ta2 * 4 + tb2) * 4
        if kk == 12: a.nop(4)
        a("ds_write_b128 v10, a[%d:%d] offset:%d" % (c2, c2 + 3, tb2 * 16 * RS + ta2 * 64))
    a("s_waitcnt lgkmcnt(0)")
    a("s_barrier")
    for p in range(4):
        for k in range(4):
            a("ds_read_b128 v[%d:%d], v11 offset:%d" % (32 + 16 * p + 4 * k, 35 + 16 * p + 4 * k, RB + p * RW + 16 * k))
    for k in range(16):
        src = 12 + k // 2
        if k % 2 == 0:
            a("v_lshlrev_b32 v%d, 16, v%d" % (96 + k, src))
        else:
            a("v_and_b32 v%d, 0xffff0000, v%d" % (96 + k, src))
    a("s_waitcnt lgkmcnt(8)")
    for k in range(0, 16, 2):
        a("v_pk_add_f32 v[%d:%d], v[%d:%d], v[%d:%d]" % (32 + k, 33 + k, 32 + k, 33 + k, 48 + k, 49 + k))
    a("s_waitcnt lgkmcnt(0)")
    for k in range(0, 16, 2):
        a("v_pk_add_f32 v[%d:%d], v[%d:%d], v[%d:%d]" % (64 + k, 65 + k, 64 + k, 65 + k, 80 + k, 81 + k))
    for k in range(0, 16, 2):
        a("v_pk_add_f32 v[%d:%d], v[%d:%d], v[%d:%d]" % (32 + k, 33 + k, 32 + k, 33 + k, 64 + k, 65 + k))
    for k in range(8):
        a("v_cvt_pk_bf16_f32 v%d, v%d, v%d" % (48 + k, 32 + 2 * k, 33 + 2 * k))
    for k in range(16):
        src = 48 + k // 2
        if k % 2 == 0:
            a("v_lshlrev_b32 v%d, 16, v%d" % (32 + k, src))
        else:
            a("v_and_b32 v%d, 0xffff0000, v%d" % (32 + k, src))
    for k in range(0, 16, 2):
        a("v_pk_add_f32 v[%d:%d], v[%d:%d], v[%d:%d]" % (32 + k, 33 + k, 32 + k, 33 + k, 96 + k, 97 + k))
    for k in range(8):
        a("v_cvt_pk_bf16_f32 v%d, v%d, v%d" % (64 + k, 32 + 2 * k, 33 + 2 * k))
    a("s_cmp_lg_u32 s30, 0")
    a("s_cbranch_scc1 L_%s_final" % name)
    a("s_add_u32 s22, s21, 0x%x" % XOUT)
    a("buffer_store_dwordx4 v[64:67], v9, s[4:7], s22 offen sc1")
    a("buffer_store_dwordx4 v[68:71], v9, s[4:7], s22 offen offset:16 sc1")
    for k in range(16):
        src = 64 + k // 2
        if k % 2 == 0:
            a("v_lshlrev_b32 v%d, 16, v%d" % (32 + k, src))
        else:
            a("v_and_b32 v%d, 0xffff0000, v%d" % (32 + k, src))
    for k in range(0, 16, 2):
        a("v_pk_mul_f32 v[%d:%d], v[%d:%d], v[%d:%d]" % (48 + k, 49 + k, 32 + k, 33 + k, 32 + k, 33 + k))
    a.nop(2)
    for k in range(16):
        a("v_permlane32_swap_b32 v%d, v%d" % (32 + k, 48 + k))
    for k in range(0, 16, 2):
        a("v_pk_add_f32 v[%d:%d], v[%d:%d], v[%d:%d]" % (32 + k, 33 + k, 32 + k, 33 + k, 48 + k, 49 + k))
    a.nop(2)
    for k in range(8):
        a("v_permlane16_swap_b32 v%d, v%d" % (32 + k, 40 + k))
    for k in range(0, 8, 2):
        a("v_pk_add_f32 v[%d:%d], v[%d:%d], v[%d:%d]" % (32 + k, 33 + k, 32 + k, 33 + k, 40 + k, 41 + k))
    for rot in (8, 4, 2, 1):
        a.nop(1)
        for k in range(8):
            a("v_add_f32_dpp v%d, v%d, v%d row_ror:%d row_mask:0xf bank_mask:0xf" % (32 + k, 32 + k, 32 + k, rot))
    for k in range(1, 8):
        a("v_cmp_eq_u32 vcc, %d, v2" % k)
        a.nop(2)
        a("v_cndmask_b32 v32, v32, v%d, vcc" % (32 + k))
    a("v_and_b32 v13, 1, v3")
    a("v_lshl_add_u32 v13, v13, 3, v2")
    a("v_lshlrev_b32 v13, 3, v13")
    a("v_lshrrev_b32 v14, 1, v3")
    a("v_lshl_add_u32 v13, v14, 2, v13")
    a("s_lshl_b32 s22, s16, 9")
    a("s_lshl_b32 s23, s3, 7")
    a("s_add_u32 s22, s22, s23")
    a("s_add_u32 s22, s22, 0x%x" % STOUT)
    a("v_cmp_gt_u32 vcc, 8, v2")
    a("s_and_saveexec_b64 s[26:27], vcc")
    a("buffer_atomic_add_f32 v32, v13, s[4:7], s22 offen")
    a.stamp_flush(slot); a.nst = getattr(a, "nst", 1) - 1
    a("s_endpgm")
    a.label("L_%s_final" % name)
    a("v_mul_u32_u24 v12, 144, v1")
    a("s_lshl_b32 s23, s3, 5")
    a("v_add_u32 v12, s23, v12")
    a("ds_write_b128 v12, v[64:67] offset:%d" % OT)
    a("ds_write_b128 v12, v[68:71] offset:%d" % (OT + 16))
    a("v_lshrrev_b32 v13, 2, v2")
    a("v_lshl_add_u32 v13, v3, 3, v13")
    a("v_mul_u32_u24 v13, 144, v13")
    a("v_and_b32 v14, 3, v2")
    a("v_lshl_add_u32 v13, v14, 3, v13")
    a("v_add_u32 v13, s23, v13")
    a("s_waitcnt lgkmcnt(0)")
    a("ds_read_b64_tr_b16 v[72:73], v13 offset:%d" % OT)
    a("ds_read_b64_tr_b16 v[74:75], v13 offset:%d" % (OT + 576))
    a("ds_read_b64_tr_b16 v[76:77], v13 offset:%d" % (OT + 4608))
    a("ds_read_b64_tr_b16 v[78:79], v13 offset:%d" % (OT + 5184))
    a("s_lshl_b32 s23, s3, 4")
    a("v_add_u32 v14, s23, v2")
    a("v_lshlrev_b32 v14, 10, v14")
    a("v_lshl_add_u32 v14, v3, 4, v14")
    a("s_lshl_b32 s22, s16, 16")
    a("s_lshl_b32 s23, s17, 7")
    a("s_add_u32 s22, s22, s23")
    a("s_waitcnt lgkmcnt(0)")
    a("buffer_store_dwordx4 v[72:75], v14, s[8:11], s22 offen sc1")
    a("buffer_store_dwordx4 v[76:79], v14, s[8:11], s22 offen offset:64 sc1")
    a.stamp_flush(slot)
    a.label("L_%s_end" % name)
    a("s_endpgm")
    return a.text(), kernel_desc(name, 248, agpr=64), RB + 4 * RW
```

```python
from asmlib import *

XTS = 4352
XT0 = 0x000000
XT1 = 0x240000
XT2 = 0x480000
XT3 = 0x6c0000
ST0 = 0x900000
ST2 = 0x904000
CS  = 0x908000
FLG = 0x90C000
KREV = 0x980000
KSTRIDE = 4224
W1F = 0xC00000
W2F = 0xE00000
HB  = 0x1000000
WS_SIZE = 0x2000000
LOG2E = 0x3fb8aa3b
INV2PI = 0x3e22f983
ONES_BF = 0x3f803f80

def common_ids(a):
    a("v_and_b32 v1, 63, v0")
    a("v_lshrrev_b32 v4, 6, v0")
    a("v_and_b32 v2, 15, v0")
    a("v_bfe_u32 v3, v0, 4, 2")
    a("v_readfirstlane_b32 s3, v4")

def gen_prep(name):
    a = Asm()
    a.raw(kernel_header(name))
    a("s_load_dwordx2 s[12:13], s[0:1], 96")
    common_ids(a)
    a.stamp()
    a("s_cmp_lt_u32 s2, 256"); a("s_cbranch_scc1 L_prep_kg")
    a("s_cmp_ge_u32 s3, 4"); a("s_cbranch_scc1 L_prep_exit")
    a("s_cmp_lt_u32 s2, 384"); a("s_cbranch_scc1 L_prep_xt")
    a("s_cmp_lt_u32 s2, 440"); a("s_cbranch_scc1 L_prep_w1")
    a("s_cmp_lt_u32 s2, 552"); a("s_cbranch_scc1 L_prep_w2")
    a.label("L_prep_exit")
    a("s_endpgm")

    a.label("L_prep_xt")
    a("s_load_dwordx2 s[14:15], s[0:1], 0")
    a("s_sub_u32 s16, s2, 256")
    a("s_waitcnt lgkmcnt(0)")
    a.srd(4, 12, WS_SIZE)
    a.srd(8, 14, 0x200000)
    a("v_lshrrev_b32 v5, 4, v0")
    a("v_lshlrev_b32 v7, 10, v5")
    a("v_lshl_add_u32 v7, v2, 4, v7")
    a("s_lshl_b32 s19, s16, 14")
    for k in range(4):
        a("buffer_load_dwordx4 v[%d:%d], v7, s[8:11], s19 offen offset:%d" % (8 + 4 * k, 11 + 4 * k, 256 * k))
    a("s_cmp_ge_u32 s16, 1")
    a("s_cbranch_scc1 L_prep_xt_nz")
    a("v_mov_b32 v40, 0")
    a("v_lshlrev_b32 v41, 2, v0")
    a("s_mov_b32 s20, 0x%x" % FLG)
    a("buffer_store_dword v40, v41, s[4:7], s20 offen")
    a.label("L_prep_xt_nz")
    a("s_mov_b32 s21, 0x%x" % ONES_BF)
    a("v_mov_b32 v30, s21")
    a("v_mul_u32_u24 v31, 1040, v5")
    a("v_lshl_add_u32 v31, v2, 4, v31")
    a("s_waitcnt vmcnt(0)")
    for k in range(4):
        a("ds_write_b128 v31, v[%d:%d] offset:%d" % (8 + 4 * k, 11 + 4 * k, 256 * k))
    a("v_dot2_f32_bf16 v32, v8, v30, 0")
    a("v_dot2_f32_bf16 v33, v8, v8, 0")
    for k in range(1, 16):
        a("v_dot2_f32_bf16 v32, v%d, v30, v32" % (8 + k))
        a("v_dot2_f32_bf16 v33, v%d, v%d, v33" % (8 + k, 8 + k))
    a.nop(4)
    for mode in ("quad_perm:[1,0,3,2]", "quad_perm:[2,3,0,1]", "row_half_mirror", "row_mirror"):
        for d in range(32, 34):
            a("v_add_f32_dpp v%d, v%d, v%d %s row_mask:0xf bank_mask:0xf" % (d, d, d, mode))
        a.nop(2)
    a("v_lshlrev_b32 v34, 3, v5")
    a("s_lshl_b32 s19, s16, 7")
    a("s_add_u32 s19, s19, 0x%x" % ST0)
    a("v_cmp_eq_u32 vcc, 0, v2")
    a("s_and_saveexec_b64 s[22:23], vcc")
    a("buffer_store_dwordx2 v[32:33], v34, s[4:7], s19 offen sc1")
    a("s_mov_b64 exec, s[22:23]")
    a("s_waitcnt lgkmcnt(0)")
    a("s_barrier")
    a("v_lshrrev_b32 v35, 2, v2")
    a("v_mul_u32_u24 v35, 1040, v35")
    a("v_and_b32 v36, 3, v2")
    a("v_lshl_add_u32 v35, v36, 3, v35")
    a("v_lshl_add_u32 v35, v3, 6, v35")
    a("s_lshl_b32 s19, s3, 8")
    a("v_add_u32 v35, s19, v35")
    for e in range(2):
        for rho in range(4):
            r = 8 + 8 * e + 2 * rho
            a("ds_read_b64_tr_b16 v[%d:%d], v35 offset:%d" % (r, r + 1, rho * 4160 + e * 32))
    a("v_lshl_add_u32 v36, v3, 5, v2")
    a("s_lshl_b32 s19, s3, 7")
    a("v_add_u32 v36, s19, v36")
    a("s_movk_i32 s19, %d" % XTS)
    a("v_mul_lo_u32 v36, v36, s19")
    a("v_add_u32 v37, %d, v36" % (16 * XTS))
    a("s_lshl_b32 s19, s16, 5")
    a("s_add_u32 s19, s19, 0x%x" % XT0)
    a("s_waitcnt lgkmcnt(0)")
    a("buffer_store_dwordx4 v[8:11], v36, s[4:7], s19 offen sc1")
    a("buffer_store_dwordx4 v[12:15], v36, s[4:7], s19 offen offset:16 sc1")
    a("buffer_store_dwordx4 v[16:19], v37, s[4:7], s19 offen sc1")
    a("buffer_store_dwordx4 v[20:23], v37, s[4:7], s19 offen offset:16 sc1")
    a.stamp_flush(6); a.nst = 1
    a("s_endpgm")

    a.label("L_prep_w1")
    a("s_load_dwordx2 s[14:15], s[0:1], 64")
    a("s_sub_u32 s16, s2, 384")
    a("s_waitcnt lgkmcnt(0)")
    a.srd(4, 12, WS_SIZE)
    a.srd(8, 14, 512 * 1792 * 2)
    a("v_lshrrev_b32 v5, 2, v0")
    a("v_and_b32 v6, 3, v0")
    a("s_movk_i32 s17, 3584")
    a("v_mul_lo_u32 v7, v5, s17")
    a("v_lshl_add_u32 v7, v6, 4, v7")
    a("s_lshl_b32 s18, s16, 6")
    for e in range(8):
        a("buffer_load_dwordx4 v[%d:%d], v7, s[8:11], s18 offen" % (8 + 4 * e, 11 + 4 * e))
        if e < 7:
            a("s_add_u32 s18, s18, %d" % (64 * 3584))
    a("v_mul_u32_u24 v40, 80, v5")
    a("v_lshl_add_u32 v40, v6, 4, v40")
    for e in range(8):
        a("s_waitcnt vmcnt(%d)" % (7 - e))
        a("ds_write_b128 v40, v[%d:%d] offset:%d" % (8 + 4 * e, 11 + 4 * e, e * 5120))
    a("s_waitcnt lgkmcnt(0)")
    a("s_barrier")
    a("v_lshrrev_b32 v41, 2, v2")
    a("v_lshl_add_u32 v41, v3, 2, v41")
    a("v_mul_u32_u24 v41, 80, v41")
    a("v_and_b32 v42, 3, v2")
    a("v_lshl_add_u32 v41, v42, 3, v41")
    a("s_mul_i32 s19, s3, 10240")
    a("v_add_u32 v41, s19, v41")
    for kk in range(4):
        for T in range(2):
            for rho in range(2):
                r = 8 + (kk * 2 + T) * 4 + rho * 2
                a("ds_read_b64_tr_b16 v[%d:%d], v41 offset:%d" % (r, r + 1, kk * 2560 + rho * 1280 + T * 32))
    a("s_mov_b32 s21, 0x%x" % ONES_BF)
    a("v_mov_b32 v43, s21")
    a("v_lshlrev_b32 v44, 4, v1")
    a("s_lshl_b32 s19, s3, 13")
    a("v_add_u32 v44, s19, v44")
    a("s_lshl_b32 s19, s16, 15")
    a("s_add_u32 s19, s19, 0x%x" % W1F)
    a("s_add_u32 s20, s19, 4096")
    a("s_waitcnt lgkmcnt(0)")
    for kk in range(4):
        for T in range(2):
            r = 8 + (kk * 2 + T) * 4
            a("buffer_store_dwordx4 v[%d:%d], v44, s[4:7], s%d offen offset:%d sc1" %
              (r, r + 3, 19 if kk < 2 else 20, (kk % 2) * 2048 + T * 1024))
    for T in range(2):
        first = True
        for kk in range(4):
            r = 8 + (kk * 2 + T) * 4
            for k in range(4):
                a("v_dot2_f32_bf16 v%d, v%d, v43, %s" % (46 + T, r + k, "0" if first else "v%d" % (46 + T)))
                first = False
    a.nop(4)
    a("v_lshlrev_b32 v45, 2, v1")
    a("s_lshl_b32 s19, s3, 9")
    a("v_add_u32 v45, s19, v45")
    a("ds_write_b32 v45, v46 offset:40960")
    a("ds_write_b32 v45, v47 offset:41216")
    a("s_waitcnt lgkmcnt(0)")
    a("s_barrier")
    a("v_cmp_gt_u32 vcc, 32, v0")
    a("s_and_saveexec_b64 s[22:23], vcc")
    a("s_cbranch_execz L_prep_w1_end")
    a("v_bfe_u32 v48, v0, 4, 1")
    a("v_lshlrev_b32 v48, 8, v48")
    a("v_lshl_add_u32 v48, v2, 2, v48")
    for w in range(4):
        for g in range(4):
            a("ds_read_b32 v%d, v48 offset:%d" % (50 + w * 4 + g, 40960 + w * 512 + g * 64))
    a("s_waitcnt lgkmcnt(0)")
    for k in range(1, 16):
        a("v_add_f32 v50, v50, v%d" % (50 + k))
    a("v_lshlrev_b32 v49, 2, v0")
    a("s_lshl_b32 s19, s16, 7")
    a("s_add_u32 s19, s19, 0x%x" % CS)
    a("buffer_store_dword v50, v49, s[4:7], s19 offen")
    a.label("L_prep_w1_end")
    a.stamp_flush(6); a.nst = 1
    a("s_endpgm")

    a.label("L_prep_w2")
    a("s_load_dwordx2 s[14:15], s[0:1], 72")
    a("s_sub_u32 s16, s2, 440")
    a("s_lshr_b32 s17, s16, 3")
    a("s_and_b32 s18, s16, 7")
    a("s_waitcnt lgkmcnt(0)")
    a.srd(4, 12, WS_SIZE)
    a.srd(8, 14, 512 * 1792 * 2)
    a("v_lshrrev_b32 v5, 3, v0")
    a("v_and_b32 v6, 7, v0")
    a("v_lshlrev_b32 v7, 10, v5")
    a("v_lshl_add_u32 v7, v6, 4, v7")
    a("s_lshl_b32 s19, s17, 17")
    a("s_lshl_b32 s20, s18, 7")
    a("s_add_u32 s19, s19, s20")
    for e in range(4):
        a("buffer_load_dwordx4 v[%d:%d], v7, s[8:11], s19 offen" % (8 + 4 * e, 11 + 4 * e))
        if e < 3:
            a("s_add_u32 s19, s19, 32768")
    a("v_mul_u32_u24 v40, 144, v5")
    a("v_lshl_add_u32 v40, v6, 4, v40")
    for e in range(4):
        a("s_waitcnt vmcnt(%d)" % (3 - e))
        a("ds_write_b128 v40, v[%d:%d] offset:%d" % (8 + 4 * e, 11 + 4 * e, e * 4608))
    a("s_waitcnt lgkmcnt(0)")
    a("s_barrier")
    a("v_lshrrev_b32 v41, 2, v2")
    a("v_lshl_add_u32 v41, v3, 2, v41")
    a("v_mul_u32_u24 v41, 144, v41")
    a("v_and_b32 v42, 3, v2")
    a("v_lshl_add_u32 v41, v42, 3, v41")
    a("s_mul_i32 s19, s3, 4608")
    a("v_add_u32 v41, s19, v41")
    for Dt in range(4):
        for rho in range(2):
            r = 8 + Dt * 4 + rho * 2
            a("ds_read_b64_tr_b16 v[%d:%d], v41 offset:%d" % (r, r + 1, rho * 2304 + Dt * 32))
    a("v_lshlrev_b32 v44, 4, v1")
    a("s_lshl_b32 s19, s3, 12")
    a("v_add_u32 v44, s19, v44")
    a("s_mul_i32 s19, s18, 56")
    a("s_lshl_b32 s20, s17, 2")
    a("s_add_u32 s19, s19, s20")
    a("s_lshl_b32 s19, s19, 12")
    a("s_add_u32 s19, s19, 0x%x" % W2F)
    a("s_waitcnt lgkmcnt(0)")
    for Dt in range(4):
        r = 8 + Dt * 4
        a("buffer_store_dwordx4 v[%d:%d], v44, s[4:7], s19 offen offset:%d sc1" % (r, r + 3, Dt * 1024))
    a.stamp_flush(6); a.nst = 1
    a("s_endpgm")

    PRM = 0
    BT = 4096
    TB = 4352
    TBS = 9728
    SCRK = TB + 2 * TBS
    a.label("L_prep_kg")
    a("s_load_dwordx4 s[16:19], s[0:1], 8")
    a("s_load_dwordx4 s[20:23], s[0:1], 24")
    a("s_load_dwordx2 s[24:25], s[0:1], 40")
    a("v_and_b32 v5, 255, v0")
    a("v_lshlrev_b32 v5, 1, v5")
    a("s_lshl_b32 s26, s2, 9")
    a("v_bfe_u32 v6, v0, 7, 1")
    a("v_lshlrev_b32 v6, 1, v6")
    a("s_lshl_b32 s27, s2, 2")
    a("s_waitcnt lgkmcnt(0)")
    a.srd(28, 16, 131072)
    a.srd(32, 18, 131072)
    a.srd(36, 20, 131072)
    a.srd(40, 22, 131072)
    a.srd(44, 24, 1024)
    a("buffer_load_ushort v8, v5, s[28:31], s26 offen")
    a("buffer_load_ushort v9, v5, s[32:35], s26 offen")
    a("buffer_load_ushort v10, v5, s[36:39], s26 offen")
    a("buffer_load_ushort v11, v5, s[40:43], s26 offen")
    a("buffer_load_ushort v12, v6, s[44:47], s27 offen")
    a.srd(4, 12, WS_SIZE)
    a("v_and_b32 v13, 7, v0")
    a("v_lshrrev_b32 v14, 3, v0")
    a("v_lshl_add_u32 v13, v14, 7, v13")
    a("v_and_b32 v14, 3, v0")
    a("v_lshlrev_b32 v14, 1, v14")
    a("v_subrev_u32 v15, 16, v0")
    a("v_lshrrev_b32 v15, 2, v15")
    a("v_lshl_add_u32 v14, v15, 7, v14")
    a("v_add_u32 v14, 0x100, v14")
    a("v_cmp_le_u32 vcc, 16, v0")
    a.nop(2)
    a("v_cndmask_b32 v13, v13, v14, vcc")
    a("v_and_b32 v14, 1, v0")
    a("v_lshlrev_b32 v14, 2, v14")
    a("v_subrev_u32 v15, 24, v0")
    a("v_lshrrev_b32 v15, 1, v15")
    a("v_lshl_add_u32 v14, v15, 7, v14")
    a("v_add_u32 v14, 0x200, v14")
    a("v_cmp_le_u32 vcc, 24, v0")
    a.nop(2)
    a("v_cndmask_b32 v13, v13, v14, vcc")
    a("v_subrev_u32 v15, 32, v0")
    a("v_lshlrev_b32 v14, 7, v15")
    a("v_add_u32 v14, 0x400, v14")
    a("v_cmp_le_u32 vcc, 32, v0")
    a.nop(2)
    a("v_cndmask_b32 v13, v13, v14, vcc")
    a("v_mov_b32 v14, 0x900")
    a("v_cmp_lt_u32 vcc, 40, v0")
    a.nop(2)
    a("v_cndmask_b32 v13, v13, v14, vcc")
    a("v_lshlrev_b32 v14, 2, v0")
    a("v_cmp_gt_u32 vcc, 48, v0")
    a("s_and_saveexec_b64 s[48:49], vcc")
    a("ds_write_b32 v14, v13 offset:%d" % BT)
    a("s_mov_b64 exec, s[48:49]")
    a("v_and_b32 v100, 255, v0")
    a("v_lshlrev_b32 v101, 3, v100")
    a("v_sub_u32 v101, 0x7ff, v101")
    a("v_lshrrev_b32 v102, 8, v0")
    a("s_movk_i32 s26, %d" % TBS)
    a("v_mul_lo_u32 v103, v102, s26")
    a("v_add_u32 v103, %d, v103" % TB)
    for k in range(8):
        a("v_subrev_u32 v%d, %d, v101" % (104 + k, k))
        a("v_cvt_f32_u32 v%d, v%d" % (104 + k, 104 + k))
    for k in range(8):
        a.bfr(104 + k, 104 + k)
    for k in range(8):
        a("v_cvt_u32_f32 v%d, v%d" % (104 + k, 104 + k))
        a("v_lshl_add_u32 v%d, v%d, 2, v103" % (104 + k, 104 + k))
    a("s_mov_b32 s26, 0x%x" % LOG2E)
    a("s_mov_b32 s27, 0x%x" % INV2PI)
    a("s_waitcnt vmcnt(0)")
    for r in range(8, 13):
        a("v_lshlrev_b32 v%d, 16, v%d" % (r, r))
    a("v_mul_f32 v12, s26, v12")
    a("v_mul_f32 v8, s26, v8")
    a("v_exp_f32 v12, v12")
    a("v_exp_f32 v8, v8")
    a.nop(1)
    a.bfr(12, 12)
    a.bfr(8, 8)
    a("v_mul_f32 v8, v8, v12")
    a("v_mul_f32 v9, v9, v12")
    a("v_mul_f32 v10, v10, v12")
    a("v_mul_f32 v11, v11, v12")
    a("v_mul_f32 v16, s26, v8")
    a("v_sub_f32 v16, 0, v16")
    a("v_mul_f32 v17, s27, v9")
    a("v_add_f32 v18, v10, v10")
    a("v_add_f32 v19, v11, v11")
    a("v_lshlrev_b32 v14, 3, v5")
    a("s_cmp_ge_u32 s3, 4")
    a("s_cbranch_scc1 L_prep_kg_np")
    a("ds_write_b128 v14, v[16:19] offset:%d" % PRM)
    a.label("L_prep_kg_np")
    a("s_waitcnt lgkmcnt(0)")
    a("s_barrier")
    a.stamp()
    a("v_lshlrev_b32 v14, 2, v2")
    for t in range(3):
        a("ds_read_b32 v%d, v14 offset:%d" % (20 + t, BT + 64 * t))
    a("v_lshlrev_b32 v23, 3, v2")
    a("v_cvt_f32_u32 v23, v23")
    a("v_lshlrev_b32 v24, 4, v3")
    a("s_lshl_b32 s26, s3, 9")
    a("v_add_u32 v24, s26, v24")
    a("ds_read_b128 v[28:31], v24 offset:%d" % PRM)
    for r in range(12):
        a("v_accvgpr_write_b32 a%d, 0" % r)
    a("v_lshlrev_b32 v14, 4, v3")
    for t in range(3):
        a("ds_read_b128 v[%d:%d], v14 offset:%d" % (80 + 4 * t, 83 + 4 * t, BT + 64 * t))
    a("s_waitcnt lgkmcnt(4)")
    for t in range(3):
        a("v_cvt_f32_u32 v%d, v%d" % (20 + t, 20 + t))
    NQ = 8
    for q in range(NQ):
        P = 28 + 4 * (q % 2)
        Pn = 28 + 4 * ((q + 1) % 2)
        a("s_waitcnt lgkmcnt(0)")
        if q < NQ - 1:
            a("ds_read_b128 v[%d:%d], v24 offset:%d" % (Pn, Pn + 3, PRM + (q + 1) * 64))
        for k in range(4):
            a("v_mul_f32 v%d, v%d, v%d" % (36 + k, P, 20 + k))
            a("v_mul_f32 v%d, v%d, v%d" % (40 + k, P + 1, 20 + k))
        for k in range(4):
            a("v_exp_f32 v%d, v%d" % (36 + k, 36 + k))
            a("v_fract_f32 v%d, v%d" % (40 + k, 40 + k))
        for k in range(4):
            a("v_sin_f32 v%d, v%d" % (44 + k, 40 + k))
            a("v_cos_f32 v%d, v%d" % (48 + k, 40 + k))
        a.nop(1)
        for k in range(4):
            a("v_mul_f32 v%d, v%d, v%d" % (44 + k, 36 + k, 44 + k))
            a("v_mul_f32 v%d, v%d, v%d" % (48 + k, 36 + k, 48 + k))
        for t in range(3):
            a("v_mul_f32 v%d, v%d, v%d" % (52 + t, P + 3, 44 + t))
            a("v_mul_f32 v%d, v%d, v%d" % (56 + t, P + 3, 48 + t))
        for t in range(3):
            a("v_fma_f32 v%d, v%d, v%d, -v%d" % (52 + t, P + 2, 48 + t, 52 + t))
            a("v_fma_f32 v%d, -v%d, v%d, -v%d" % (56 + t, P + 2, 44 + t, 56 + t))
        a.nop(2)
        for t in range(3):
            a("v_mfma_f32_16x16x4_f32 a[%d:%d], v%d, v51, a[%d:%d]" % (4 * t, 4 * t + 3, 52 + t, 4 * t, 4 * t + 3))
        for t in range(3):
            a("v_mfma_f32_16x16x4_f32 a[%d:%d], v%d, v47, a[%d:%d]" % (4 * t, 4 * t + 3, 56 + t, 4 * t, 4 * t + 3))
    a.stamp()
    a("v_lshlrev_b32 v15, 5, v2")
    a("s_lshr_b32 s26, s3, 2")
    a("s_mul_i32 s26, s26, %d" % TBS)
    a("s_add_u32 s26, s26, %d" % TB)
    a("v_add_u32 v15, s26, v15")
    for k in range(12):
        a("v_lshl_add_u32 v%d, v%d, 2, v15" % (80 + k, 80 + k))
    a("v_lshlrev_b32 v16, 4, v1")
    a("s_mul_i32 s26, s3, 3072")
    a("v_add_u32 v16, s26, v16")
    a("s_and_b32 s27, s3, 3")
    a("s_cmp_eq_u32 s27, 0")
    a("s_cbranch_scc1 L_prep_kg_a")
    for t in range(3):
        a("ds_write_b128 v16, a[%d:%d] offset:%d" % (4 * t, 4 * t + 3, SCRK + 1024 * t))
    a("s_waitcnt lgkmcnt(0)")
    a("s_barrier")
    a("s_barrier")
    a("s_branch L_prep_kg_b")
    a.label("L_prep_kg_a")
    for k in range(12):
        a("v_accvgpr_read_b32 v%d, a%d" % (64 + k, k))
    a("s_barrier")
    PB = [20, 32, 44]
    for ps in ([1, 2, 3],):
        for j, p in enumerate(ps):
            for t in range(3):
                a("ds_read_b128 v[%d:%d], v16 offset:%d" % (PB[j] + 4 * t, PB[j] + 4 * t + 3, SCRK + 3072 * p + 1024 * t))
        a("s_waitcnt lgkmcnt(0)")
        for k in range(12):
            a("v_add_f32 v%d, v%d, v%d" % (64 + k, 64 + k, 20 + k))
            if len(ps) == 3:
                a("v_add_f32 v%d, v%d, v%d" % (32 + k, 32 + k, 44 + k))
        if len(ps) == 3:
            for k in range(12):
                a("v_add_f32 v%d, v%d, v%d" % (64 + k, 64 + k, 32 + k))
    for k in range(12):
        a("ds_write_b32 v%d, v%d" % (80 + k, 64 + k))
    a("s_waitcnt lgkmcnt(0)")
    a("s_barrier")
    a.label("L_prep_kg_b")
    a.stamp()
    a("s_cmp_ge_u32 s3, 8")
    a("s_cbranch_scc1 L_prep_kg_end")
    for k in range(8):
        a("ds_read_b32 v%d, v%d" % (32 + k, 104 + k))
    a("s_movk_i32 s26, %d" % KSTRIDE)
    a("v_mul_lo_u32 v7, v102, s26")
    a("v_lshl_add_u32 v8, v100, 4, v7")
    a("s_mul_i32 s26, s2, %d" % (2 * KSTRIDE))
    a("s_add_u32 s26, s26, 0x%x" % KREV)
    for k in range(4):
        a("v_mov_b32 v%d, 0" % (56 + k))
    a("s_waitcnt lgkmcnt(0)")
    for k in range(4):
        a("v_cvt_pk_bf16_f32 v%d, v%d, v%d" % (48 + k, 32 + 2 * k, 33 + 2 * k))
    a("buffer_store_dwordx4 v[48:51], v8, s[4:7], s26 offen sc1")
    a("v_cmp_gt_u32 vcc, 8, v100")
    a("s_and_saveexec_b64 s[48:49], vcc")
    a("s_cbranch_execz L_prep_kg_end")
    a("s_add_u32 s26, s26, 4096")
    a("buffer_store_dwordx4 v[56:59], v8, s[4:7], s26 offen sc1")
    a.label("L_prep_kg_end")
    a.stamp_flush(6)
    a("s_endpgm")
    return a.text(), kernel_desc(name, 112, agpr=12)
```

```python
import sys
from asmlib import *
from gen_prep import *
from gen_conv import *
from gen_gemm import *

def build():
    ks = {}
    t, d = gen_prep("prep_kernel"); ks["prep_kernel"] = (t, d, 552, 49152)
    t, d, l = gen_conv("conv_kernel", XT0, XT1, ST0); ks["conv_kernel"] = (t, d, 256, l)
    t, d, l = gen_gemm1("g1_kernel", XT1); ks["g1_kernel"] = (t, d, 224, l)
    t, d, l = gen_gemm2("g2_kernel", XT1, XT0, ST0); ks["g2_kernel"] = (t, d, 256, l)
    out = []
    for n in ["prep_kernel", "conv_kernel", "g1_kernel", "g2_kernel", "conv_kernel", "g1_kernel", "g2_kernel"]:
        t, d, g, l = ks[n]
        out.append("; @launch kernel=%s grid=(%d,1,1) block=(%d,1,1) lds=%d" % (n, g, 512 if n == "prep_kernel" else 256, l))
    out.append('.amdgcn_target "amdgcn-amd-amdhsa--gfx950"')
    out.append(".text")
    for n in ks: out.append(ks[n][0])
    out.append('.section .rodata,"a"')
    for n in ks: out.append(ks[n][1])
    return "\n".join(out)

if __name__ == "__main__":
    path = sys.argv[1] if len(sys.argv) > 1 else "interleave_layers__ssm_conv_s4d__dense_activation_relu__prompt.s"
    if len(sys.argv) > 2: Asm.STAMPS = True
    open(path, "w").write(build())
    print("wrote", path)
```

```python
from asmlib import *

XTS = 4352
XT0 = 0x000000
XT1 = 0x240000
XT2 = 0x480000
XT3 = 0x6c0000
ST0 = 0x900000
ST2 = 0x904000
CS  = 0x908000
FLG = 0x90C000
KREV = 0x980000
KSTRIDE = 4224
W1F = 0xC00000
W2F = 0xE00000
HB  = 0x1000000
WS_SIZE = 0x2000000
LOG2E = 0x3fb8aa3b
INV2PI = 0x3e22f983
ONES_BF = 0x3f803f80

def common_ids(a):
    a("v_and_b32 v1, 63, v0")
    a("v_lshrrev_b32 v4, 6, v0")
    a("v_and_b32 v2, 15, v0")
    a("v_bfe_u32 v3, v0, 4, 2")
    a("v_readfirstlane_b32 s3, v4")

def gen_prep(name):
    a = Asm()
    a.raw(kernel_header(name))
    a("s_load_dwordx2 s[12:13], s[0:1], 96")
    common_ids(a)
    a.stamp()
    a("s_cmp_lt_u32 s2, 256"); a("s_cbranch_scc1 L_prep_kg")
    a("s_cmp_ge_u32 s3, 4"); a("s_cbranch_scc1 L_prep_exit")
    a("s_cmp_lt_u32 s2, 384"); a("s_cbranch_scc1 L_prep_xt")
    a("s_cmp_lt_u32 s2, 440"); a("s_cbranch_scc1 L_prep_w1")
    a("s_cmp_lt_u32 s2, 552"); a("s_cbranch_scc1 L_prep_w2")
    a.label("L_prep_exit")
    a("s_endpgm")

    a.label("L_prep_xt")
    a("s_load_dwordx2 s[14:15], s[0:1], 0")
    a("s_sub_u32 s16, s2, 256")
    a("s_waitcnt lgkmcnt(0)")
    a.srd(4, 12, WS_SIZE)
    a.srd(8, 14, 0x200000)
    a("v_lshrrev_b32 v5, 4, v0")
    a("v_lshlrev_b32 v7, 10, v5")
    a("v_lshl_add_u32 v7, v2, 4, v7")
    a("s_lshl_b32 s19, s16, 14")
    for k in range(4):
        a("buffer_load_dwordx4 v[%d:%d], v7, s[8:11], s19 offen offset:%d" % (8 + 4 * k, 11 + 4 * k, 256 * k))
    a("s_cmp_ge_u32 s16, 1")
    a("s_cbranch_scc1 L_prep_xt_nz")
    a("v_mov_b32 v40, 0")
    a("v_lshlrev_b32 v41, 2, v0")
    a("s_mov_b32 s20, 0x%x" % FLG)
    a("buffer_store_dword v40, v41, s[4:7], s20 offen")
    a.label("L_prep_xt_nz")
    a("s_mov_b32 s21, 0x%x" % ONES_BF)
    a("v_mov_b32 v30, s21")
    a("v_mul_u32_u24 v31, 1040, v5")
    a("v_lshl_add_u32 v31, v2, 4, v31")
    a("s_waitcnt vmcnt(0)")
    for k in range(4):
        a("ds_write_b128 v31, v[%d:%d] offset:%d" % (8 + 4 * k, 11 + 4 * k, 256 * k))
    a("v_dot2_f32_bf16 v32, v8, v30, 0")
    a("v_dot2_f32_bf16 v33, v8, v8, 0")
    for k in range(1, 16):
        a("v_dot2_f32_bf16 v32, v%d, v30, v32" % (8 + k))
        a("v_dot2_f32_bf16 v33, v%d, v%d, v33" % (8 + k, 8 + k))
    a.nop(4)
    for mode in ("quad_perm:[1,0,3,2]", "quad_perm:[2,3,0,1]", "row_half_mirror", "row_mirror"):
        for d in range(32, 34):
            a("v_add_f32_dpp v%d, v%d, v%d %s row_mask:0xf bank_mask:0xf" % (d, d, d, mode))
        a.nop(2)
    a("v_lshlrev_b32 v34, 3, v5")
    a("s_lshl_b32 s19, s16, 7")
    a("s_add_u32 s19, s19, 0x%x" % ST0)
    a("v_cmp_eq_u32 vcc, 0, v2")
    a("s_and_saveexec_b64 s[22:23], vcc")
    a("buffer_store_dwordx2 v[32:33], v34, s[4:7], s19 offen sc1")
    a("s_mov_b64 exec, s[22:23]")
    a("s_waitcnt lgkmcnt(0)")
    a("s_barrier")
    a("v_lshrrev_b32 v35, 2, v2")
    a("v_mul_u32_u24 v35, 1040, v35")
    a("v_and_b32 v36, 3, v2")
    a("v_lshl_add_u32 v35, v36, 3, v35")
    a("v_lshl_add_u32 v35, v3, 6, v35")
    a("s_lshl_b32 s19, s3, 8")
    a("v_add_u32 v35, s19, v35")
    for e in range(2):
        for rho in range(4):
            r = 8 + 8 * e + 2 * rho
            a("ds_read_b64_tr_b16 v[%d:%d], v35 offset:%d" % (r, r + 1, rho * 4160 + e * 32))
    a("v_lshl_add_u32 v36, v3, 5, v2")
    a("s_lshl_b32 s19, s3, 7")
    a("v_add_u32 v36, s19, v36")
    a("s_movk_i32 s19, %d" % XTS)
    a("v_mul_lo_u32 v36, v36, s19")
    a("v_add_u32 v37, %d, v36" % (16 * XTS))
    a("s_lshl_b32 s19, s16, 5")
    a("s_add_u32 s19, s19, 0x%x" % XT0)
    a("s_waitcnt lgkmcnt(0)")
    a("buffer_store_dwordx4 v[8:11], v36, s[4:7], s19 offen sc1")
    a("buffer_store_dwordx4 v[12:15], v36, s[4:7], s19 offen offset:16 sc1")
    a("buffer_store_dwordx4 v[16:19], v37, s[4:7], s19 offen sc1")
    a("buffer_store_dwordx4 v[20:23], v37, s[4:7], s19 offen offset:16 sc1")
    a.stamp_flush(6); a.nst = 1
    a("s_endpgm")

    a.label("L_prep_w1")
    a("s_load_dwordx2 s[14:15], s[0:1], 64")
    a("s_sub_u32 s16, s2, 384")
    a("s_waitcnt lgkmcnt(0)")
    a.srd(4, 12, WS_SIZE)
    a.srd(8, 14, 512 * 1792 * 2)
    a("v_lshrrev_b32 v5, 2, v0")
    a("v_and_b32 v6, 3, v0")
    a("s_movk_i32 s17, 3584")
    a("v_mul_lo_u32 v7, v5, s17")
    a("v_lshl_add_u32 v7, v6, 4, v7")
    a("s_lshl_b32 s18, s16, 6")
    for e in range(8):
        a("buffer_load_dwordx4 v[%d:%d], v7, s[8:11], s18 offen" % (8 + 4 * e, 11 + 4 * e))
        if e < 7:
            a("s_add_u32 s18, s18, %d" % (64 * 3584))
    a("v_mul_u32_u24 v40, 80, v5")
    a("v_lshl_add_u32 v40, v6, 4, v40")
    for e in range(8):
        a("s_waitcnt vmcnt(%d)" % (7 - e))
        a("ds_write_b128 v40, v[%d:%d] offset:%d" % (8 + 4 * e, 11 + 4 * e, e * 5120))
    a("s_waitcnt lgkmcnt(0)")
    a("s_barrier")
    a("v_lshrrev_b32 v41, 2, v2")
    a("v_lshl_add_u32 v41, v3, 2, v41")
    a("v_mul_u32_u24 v41, 80, v41")
    a("v_and_b32 v42, 3, v2")
    a("v_lshl_add_u32 v41, v42, 3, v41")
    a("s_mul_i32 s19, s3, 10240")
    a("v_add_u32 v41, s19, v41")
    for kk in range(4):
        for T in range(2):
            for rho in range(2):
                r = 8 + (kk * 2 + T) * 4 + rho * 2
                a("ds_read_b64_tr_b16 v[%d:%d], v41 offset:%d" % (r, r + 1, kk * 2560 + rho * 1280 + T * 32))
    a("s_mov_b32 s21, 0x%x" % ONES_BF)
    a("v_mov_b32 v43, s21")
    a("v_lshlrev_b32 v44, 4, v1")
    a("s_lshl_b32 s19, s3, 13")
    a("v_add_u32 v44, s19, v44")
    a("s_lshl_b32 s19, s16, 15")
    a("s_add_u32 s19, s19, 0x%x" % W1F)
    a("s_add_u32 s20, s19, 4096")
    a("s_waitcnt lgkmcnt(0)")
    for kk in range(4):
        for T in range(2):
            r = 8 + (kk * 2 + T) * 4
            a("buffer_store_dwordx4 v[%d:%d], v44, s[4:7], s%d offen offset:%d sc1" %
              (r, r + 3, 19 if kk < 2 else 20, (kk % 2) * 2048 + T * 1024))
    for T in range(2):
        first = True
        for kk in range(4):
            r = 8 + (kk * 2 + T) * 4
            for k in range(4):
                a("v_dot2_f32_bf16 v%d, v%d, v43, %s" % (46 + T, r + k, "0" if first else "v%d" % (46 + T)))
                first = False
    a.nop(4)
    a("v_lshlrev_b32 v45, 2, v1")
    a("s_lshl_b32 s19, s3, 9")
    a("v_add_u32 v45, s19, v45")
    a("ds_write_b32 v45, v46 offset:40960")
    a("ds_write_b32 v45, v47 offset:41216")
    a("s_waitcnt lgkmcnt(0)")
    a("s_barrier")
    a("v_cmp_gt_u32 vcc, 32, v0")
    a("s_and_saveexec_b64 s[22:23], vcc")
    a("s_cbranch_execz L_prep_w1_end")
    a("v_bfe_u32 v48, v0, 4, 1")
    a("v_lshlrev_b32 v48, 8, v48")
    a("v_lshl_add_u32 v48, v2, 2, v48")
    for w in range(4):
        for g in range(4):
            a("ds_read_b32 v%d, v48 offset:%d" % (50 + w * 4 + g, 40960 + w * 512 + g * 64))
    a("s_waitcnt lgkmcnt(0)")
    for k in range(1, 16):
        a("v_add_f32 v50, v50, v%d" % (50 + k))
    a("v_lshlrev_b32 v49, 2, v0")
    a("s_lshl_b32 s19, s16, 7")
    a("s_add_u32 s19, s19, 0x%x" % CS)
    a("buffer_store_dword v50, v49, s[4:7], s19 offen")
    a.label("L_prep_w1_end")
    a.stamp_flush(6); a.nst = 1
    a("s_endpgm")

    a.label("L_prep_w2")
    a("s_load_dwordx2 s[14:15], s[0:1], 72")
    a("s_sub_u32 s16, s2, 440")
    a("s_lshr_b32 s17, s16, 3")
    a("s_and_b32 s18, s16, 7")
    a("s_waitcnt lgkmcnt(0)")
    a.srd(4, 12, WS_SIZE)
    a.srd(8, 14, 512 * 1792 * 2)
    a("v_lshrrev_b32 v5, 3, v0")
    a("v_and_b32 v6, 7, v0")
    a("v_lshlrev_b32 v7, 10, v5")
    a("v_lshl_add_u32 v7, v6, 4, v7")
    a("s_lshl_b32 s19, s17, 17")
    a("s_lshl_b32 s20, s18, 7")
    a("s_add_u32 s19, s19, s20")
    for e in range(4):
        a("buffer_load_dwordx4 v[%d:%d], v7, s[8:11], s19 offen" % (8 + 4 * e, 11 + 4 * e))
        if e < 3:
            a("s_add_u32 s19, s19, 32768")
    a("v_mul_u32_u24 v40, 144, v5")
    a("v_lshl_add_u32 v40, v6, 4, v40")
    for e in range(4):
        a("s_waitcnt vmcnt(%d)" % (3 - e))
        a("ds_write_b128 v40, v[%d:%d] offset:%d" % (8 + 4 * e, 11 + 4 * e, e * 4608))
    a("s_waitcnt lgkmcnt(0)")
    a("s_barrier")
    a("v_lshrrev_b32 v41, 2, v2")
    a("v_lshl_add_u32 v41, v3, 2, v41")
    a("v_mul_u32_u24 v41, 144, v41")
    a("v_and_b32 v42, 3, v2")
    a("v_lshl_add_u32 v41, v42, 3, v41")
    a("s_mul_i32 s19, s3, 4608")
    a("v_add_u32 v41, s19, v41")
    for Dt in range(4):
        for rho in range(2):
            r = 8 + Dt * 4 + rho * 2
            a("ds_read_b64_tr_b16 v[%d:%d], v41 offset:%d" % (r, r + 1, rho * 2304 + Dt * 32))
    a("v_lshlrev_b32 v44, 4, v1")
    a("s_lshl_b32 s19, s3, 12")
    a("v_add_u32 v44, s19, v44")
    a("s_mul_i32 s19, s18, 56")
    a("s_lshl_b32 s20, s17, 2")
    a("s_add_u32 s19, s19, s20")
    a("s_lshl_b32 s19, s19, 12")
    a("s_add_u32 s19, s19, 0x%x" % W2F)
    a("s_waitcnt lgkmcnt(0)")
    for Dt in range(4):
        r = 8 + Dt * 4
        a("buffer_store_dwordx4 v[%d:%d], v44, s[4:7], s19 offen offset:%d sc1" % (r, r + 3, Dt * 1024))
    a.stamp_flush(6); a.nst = 1
    a("s_endpgm")

    PRM = 0
    BT = 4096
    TB = 4352
    TBS = 9728
    SCRK = TB + 2 * TBS
    a.label("L_prep_kg")
    a("s_load_dwordx4 s[16:19], s[0:1], 8")
    a("s_load_dwordx4 s[20:23], s[0:1], 24")
    a("s_load_dwordx2 s[24:25], s[0:1], 40")
    a("v_and_b32 v5, 255, v0")
    a("v_lshlrev_b32 v5, 1, v5")
    a("s_lshl_b32 s26, s2, 9")
    a("v_bfe_u32 v6, v0, 7, 1")
    a("v_lshlrev_b32 v6, 1, v6")
    a("s_lshl_b32 s27, s2, 2")
    a("s_waitcnt lgkmcnt(0)")
    a.srd(28, 16, 131072)
    a.srd(32, 18, 131072)
    a.srd(36, 20, 131072)
    a.srd(40, 22, 131072)
    a.srd(44, 24, 1024)
    a("buffer_load_ushort v8, v5, s[28:31], s26 offen")
    a("buffer_load_ushort v9, v5, s[32:35], s26 offen")
    a("buffer_load_ushort v10, v5, s[36:39], s26 offen")
    a("buffer_load_ushort v11, v5, s[40:43], s26 offen")
    a("buffer_load_ushort v12, v6, s[44:47], s27 offen")
    a.srd(4, 12, WS_SIZE)
    a("v_and_b32 v13, 7, v0")
    a("v_lshrrev_b32 v14, 3, v0")
    a("v_lshl_add_u32 v13, v14, 7, v13")
    a("v_and_b32 v14, 3, v0")
    a("v_lshlrev_b32 v14, 1, v14")
    a("v_subrev_u32 v15, 16, v0")
    a("v_lshrrev_b32 v15, 2, v15")
    a("v_lshl_add_u32 v14, v15, 7, v14")
    a("v_add_u32 v14, 0x100, v14")
    a("v_cmp_le_u32 vcc, 16, v0")
    a.nop(2)
    a("v_cndmask_b32 v13, v13, v14, vcc")
    a("v_and_b32 v14, 1, v0")
    a("v_lshlrev_b32 v14, 2, v14")
    a("v_subrev_u32 v15, 24, v0")
    a("v_lshrrev_b32 v15, 1, v15")
    a("v_lshl_add_u32 v14, v15, 7, v14")
    a("v_add_u32 v14, 0x200, v14")
    a("v_cmp_le_u32 vcc, 24, v0")
    a.nop(2)
    a("v_cndmask_b32 v13, v13, v14, vcc")
    a("v_subrev_u32 v15, 32, v0")
    a("v_lshlrev_b32 v14, 7, v15")
    a("v_add_u32 v14, 0x400, v14")
    a("v_cmp_le_u32 vcc, 32, v0")
    a.nop(2)
    a("v_cndmask_b32 v13, v13, v14, vcc")
    a("v_mov_b32 v14, 0x900")
    a("v_cmp_lt_u32 vcc, 40, v0")
    a.nop(2)
    a("v_cndmask_b32 v13, v13, v14, vcc")
    a("v_lshlrev_b32 v14, 2, v0")
    a("v_cmp_gt_u32 vcc, 48, v0")
    a("s_and_saveexec_b64 s[48:49], vcc")
    a("ds_write_b32 v14, v13 offset:%d" % BT)
    a("s_mov_b64 exec, s[48:49]")
    a("v_and_b32 v100, 255, v0")
    a("v_lshlrev_b32 v101, 3, v100")
    a("v_sub_u32 v101, 0x7ff, v101")
    a("v_lshrrev_b32 v102, 8, v0")
    a("s_movk_i32 s26, %d" % TBS)
    a("v_mul_lo_u32 v103, v102, s26")
    a("v_add_u32 v103, %d, v103" % TB)
    for k in range(8):
        a("v_subrev_u32 v%d, %d, v101" % (104 + k, k))
        a("v_cvt_f32_u32 v%d, v%d" % (104 + k, 104 + k))
    for k in range(8):
        a.bfr(104 + k, 104 + k)
    for k in range(8):
        a("v_cvt_u32_f32 v%d, v%d" % (104 + k, 104 + k))
        a("v_lshl_add_u32 v%d, v%d, 2, v103" % (104 + k, 104 + k))
    a("s_mov_b32 s26, 0x%x" % LOG2E)
    a("s_mov_b32 s27, 0x%x" % INV2PI)
    a("s_waitcnt vmcnt(0)")
    for r in range(8, 13):
        a("v_lshlrev_b32 v%d, 16, v%d" % (r, r))
    a("v_mul_f32 v12, s26, v12")
    a("v_mul_f32 v8, s26, v8")
    a("v_exp_f32 v12, v12")
    a("v_exp_f32 v8, v8")
    a.nop(1)
    a.bfr(12, 12)
    a.bfr(8, 8)
    a("v_mul_f32 v8, v8, v12")
    a("v_mul_f32 v9, v9, v12")
    a("v_mul_f32 v10, v10, v12")
    a("v_mul_f32 v11, v11, v12")
    a("v_mul_f32 v16, s26, v8")
    a("v_sub_f32 v16, 0, v16")
    a("v_mul_f32 v17, s27, v9")
    a("v_add_f32 v18, v10, v10")
    a("v_add_f32 v19, v11, v11")
    a("v_lshlrev_b32 v14, 3, v5")
    a("s_cmp_ge_u32 s3, 4")
    a("s_cbranch_scc1 L_prep_kg_np")
    a("ds_write_b128 v14, v[16:19] offset:%d" % PRM)
    a.label("L_prep_kg_np")
    a("s_waitcnt lgkmcnt(0)")
    a("s_barrier")
    a.stamp()
    a("v_lshlrev_b32 v14, 2, v2")
    for t in range(3):
        a("ds_read_b32 v%d, v14 offset:%d" % (20 + t, BT + 64 * t))
    a("v_lshlrev_b32 v23, 3, v2")
    a("v_cvt_f32_u32 v23, v23")
    a("v_lshlrev_b32 v24, 6, v3")
    a("s_lshl_b32 s26, s3, 9")
    a("v_add_u32 v24, s26, v24")
    a("ds_read_b128 v[28:31], v24 offset:%d" % PRM)
    for r in range(12):
        a("v_accvgpr_write_b32 a%d, 0" % r)
    a("v_lshlrev_b32 v14, 4, v3")
    for t in range(3):
        a("ds_read_b128 v[%d:%d], v14 offset:%d" % (80 + 4 * t, 83 + 4 * t, BT + 64 * t))
    a("s_waitcnt lgkmcnt(4)")
    for t in range(3):
        a("v_cvt_f32_u32 v%d, v%d" % (20 + t, 20 + t))
    HI = 60
    LO = 4
    NS = 8
    for st in range(NS):
        Q, jj = st // 4, st % 4
        P = 28 + 4 * (st % 2)
        Pn = 28 + 4 * ((st + 1) % 2)
        a("s_waitcnt lgkmcnt(0)")
        if st < NS - 1:
            Q2, j2 = (st + 1) // 4, (st + 1) % 4
            a("ds_read_b128 v[%d:%d], v24 offset:%d" % (Pn, Pn + 3, PRM + Q2 * 256 + j2 * 16))
        for k in range(4):
            a("v_mul_f32 v%d, v%d, v%d" % (36 + k, P, 20 + k))
            a("v_mul_f32 v%d, v%d, v%d" % (40 + k, P + 1, 20 + k))
        for k in range(4):
            a("v_exp_f32 v%d, v%d" % (36 + k, 36 + k))
            a("v_fract_f32 v%d, v%d" % (40 + k, 40 + k))
        for k in range(4):
            a("v_sin_f32 v%d, v%d" % (44 + k, 40 + k))
            a("v_cos_f32 v%d, v%d" % (48 + k, 40 + k))
        a.nop(1)
        for k in range(4):
            a("v_mul_f32 v%d, v%d, v%d" % (44 + k, 36 + k, 44 + k))
            a("v_mul_f32 v%d, v%d, v%d" % (48 + k, 36 + k, 48 + k))
        for t in range(3):
            a("v_mul_f32 v%d, v%d, v%d" % (52 + t, P + 3, 44 + t))
            a("v_mul_f32 v%d, v%d, v%d" % (56 + t, P + 3, 48 + t))
        for t in range(3):
            a("v_fma_f32 v%d, v%d, v%d, -v%d" % (52 + t, P + 2, 48 + t, 52 + t))
            a("v_fma_f32 v%d, -v%d, v%d, -v%d" % (56 + t, P + 2, 44 + t, 56 + t))
        vals = [(52, 56), (53, 57), (54, 58), (51, 47)]
        for k, (re, im) in enumerate(vals):
            a("v_cvt_pk_bf16_f32 v%d, v%d, v%d" % (HI + 4 * k + jj, re, im))
        for k, (re, im) in enumerate(vals):
            a("v_lshlrev_b32 v%d, 16, v%d" % (36 + k, HI + 4 * k + jj))
            a("v_and_b32 v%d, 0xffff0000, v%d" % (40 + k, HI + 4 * k + jj))
        for k, (re, im) in enumerate(vals):
            a("v_sub_f32 v%d, v%d, v%d" % (36 + k, re, 36 + k))
            a("v_sub_f32 v%d, v%d, v%d" % (40 + k, im, 40 + k))
        for k in range(4):
            a("v_cvt_pk_bf16_f32 v%d, v%d, v%d" % (LO + 4 * k + jj, 36 + k, 40 + k))
        if jj == 3:
            a.nop(2)
            for (A, B) in ((HI, HI), (HI, LO), (LO, HI)):
                for t in range(3):
                    a("v_mfma_f32_16x16x32_bf16 a[%d:%d], v[%d:%d], v[%d:%d], a[%d:%d]" % (
                        4 * t, 4 * t + 3, A + 4 * t, A + 4 * t + 3, B + 12, B + 15, 4 * t, 4 * t + 3))
    a.stamp()
    a("v_lshlrev_b32 v15, 5, v2")
    a("s_lshr_b32 s26, s3, 2")
    a("s_mul_i32 s26, s26, %d" % TBS)
    a("s_add_u32 s26, s26, %d" % TB)
    a("v_add_u32 v15, s26, v15")
    for k in range(12):
        a("v_lshl_add_u32 v%d, v%d, 2, v15" % (80 + k, 80 + k))
    a("v_lshlrev_b32 v16, 4, v1")
    a("s_mul_i32 s26, s3, 3072")
    a("v_add_u32 v16, s26, v16")
    a("s_and_b32 s27, s3, 3")
    a("s_cmp_eq_u32 s27, 0")
    a("s_cbranch_scc1 L_prep_kg_a")
    for t in range(3):
        a("ds_write_b128 v16, a[%d:%d] offset:%d" % (4 * t, 4 * t + 3, SCRK + 1024 * t))
    a("s_waitcnt lgkmcnt(0)")
    a("s_barrier")
    a("s_barrier")
    a("s_branch L_prep_kg_b")
    a.label("L_prep_kg_a")
    for k in range(12):
        a("v_accvgpr_read_b32 v%d, a%d" % (64 + k, k))
    a("s_barrier")
    PB = [20, 32, 44]
    for ps in ([1, 2, 3],):
        for j, p in enumerate(ps):
            for t in range(3):
                a("ds_read_b128 v[%d:%d], v16 offset:%d" % (PB[j] + 4 * t, PB[j] + 4 * t + 3, SCRK + 3072 * p + 1024 * t))
        a("s_waitcnt lgkmcnt(0)")
        for k in range(12):
            a("v_add_f32 v%d, v%d, v%d" % (64 + k, 64 + k, 20 + k))
            if len(ps) == 3:
                a("v_add_f32 v%d, v%d, v%d" % (32 + k, 32 + k, 44 + k))
        if len(ps) == 3:
            for k in range(12):
                a("v_add_f32 v%d, v%d, v%d" % (64 + k, 64 + k, 32 + k))
    for k in range(12):
        a("ds_write_b32 v%d, v%d" % (80 + k, 64 + k))
    a("s_waitcnt lgkmcnt(0)")
    a("s_barrier")
    a.label("L_prep_kg_b")
    a.stamp()
    a("s_cmp_ge_u32 s3, 8")
    a("s_cbranch_scc1 L_prep_kg_end")
    for k in range(8):
        a("ds_read_b32 v%d, v%d" % (32 + k, 104 + k))
    a("s_movk_i32 s26, %d" % KSTRIDE)
    a("v_mul_lo_u32 v7, v102, s26")
    a("v_lshl_add_u32 v8, v100, 4, v7")
    a("s_mul_i32 s26, s2, %d" % (2 * KSTRIDE))
    a("s_add_u32 s26, s26, 0x%x" % KREV)
    for k in range(4):
        a("v_mov_b32 v%d, 0" % (56 + k))
    a("s_waitcnt lgkmcnt(0)")
    for k in range(4):
        a("v_cvt_pk_bf16_f32 v%d, v%d, v%d" % (48 + k, 32 + 2 * k, 33 + 2 * k))
    a("buffer_store_dwordx4 v[48:51], v8, s[4:7], s26 offen sc1")
    a("v_cmp_gt_u32 vcc, 8, v100")
    a("s_and_saveexec_b64 s[48:49], vcc")
    a("s_cbranch_execz L_prep_kg_end")
    a("s_add_u32 s26, s26, 4096")
    a("buffer_store_dwordx4 v[56:59], v8, s[4:7], s26 offen sc1")
    a.label("L_prep_kg_end")
    a.stamp_flush(6)
    a("s_endpgm")
    return a.text(), kernel_desc(name, 112, agpr=12)
```

```python
from asmlib import *
from gen_prep import *

EPS = 0x3727c5ac
PREFETCH = False

def emit_ln_scalars(a, S, Q, M, RS, SB, t0):
    a("v_mul_f32 v%d, 0x3b000000, v%d" % (S, S))
    a("v_mul_f32 v%d, 0x3b000000, v%d" % (Q, Q))
    a("v_fma_f32 v%d, -v%d, v%d, v%d" % (Q, S, S, Q))
    a("v_max_f32 v%d, 0, v%d" % (Q, Q))
    a.bfr(M, S)
    a.bfr(Q, Q)
    a("v_add_f32 v%d, 0x%x, v%d" % (Q, EPS, Q))
    a.bfr(Q, Q)
    a("v_sqrt_f32 v%d, v%d" % (Q, Q))
    a.nop(1)
    a.bfr(SB, Q)
    a("v_rcp_f32 v%d, v%d" % (RS, SB))

def emit_ln_scalars_multi(a, items):
    for (S, Q, M, RS, SB) in items:
        a("v_mul_f32 v%d, 0x3b000000, v%d" % (S, S))
        a("v_mul_f32 v%d, 0x3b000000, v%d" % (Q, Q))
    for (S, Q, M, RS, SB) in items:
        a("v_fma_f32 v%d, -v%d, v%d, v%d" % (Q, S, S, Q))
    for (S, Q, M, RS, SB) in items:
        a("v_max_f32 v%d, 0, v%d" % (Q, Q))
    for (S, Q, M, RS, SB) in items:
        a("v_cvt_pk_bf16_f32 v%d, v%d, v%d" % (Q, Q, S))
    for (S, Q, M, RS, SB) in items:
        a("v_and_b32 v%d, 0xffff0000, v%d" % (M, Q))
        a("v_lshlrev_b32 v%d, 16, v%d" % (Q, Q))
    for (S, Q, M, RS, SB) in items:
        a("v_add_f32 v%d, 0x%x, v%d" % (Q, EPS, Q))
    for (S, Q, M, RS, SB) in items:
        a("v_cvt_pk_bf16_f32 v%d, v%d, v%d" % (Q, Q, Q))
    for (S, Q, M, RS, SB) in items:
        a("v_lshlrev_b32 v%d, 16, v%d" % (Q, Q))
    for (S, Q, M, RS, SB) in items:
        a("v_sqrt_f32 v%d, v%d" % (Q, Q))
    a.nop(1)
    for (S, Q, M, RS, SB) in items:
        a("v_cvt_pk_bf16_f32 v%d, v%d, v%d" % (SB, Q, Q))
    for (S, Q, M, RS, SB) in items:
        a("v_lshlrev_b32 v%d, 16, v%d" % (SB, SB))
    for (S, Q, M, RS, SB) in items:
        a("v_rcp_f32 v%d, v%d" % (RS, SB))
    a.nop(1)

def gen_conv(name, XIN, XOUT, ST, slot=0):
    a = Asm()
    a.raw(kernel_header(name))
    UB = 512; US = 4608
    XS = 9728; XSS = 4096
    SCR = 17920
    KC = 34304; CSTR = 4256; KCS = 8 * CSTR
    a("s_cmp_ge_u32 s2, 256")
    a("s_cbranch_scc1 L_%s_end" % name)
    a("s_load_dwordx2 s[12:13], s[0:1], 96")
    a("s_load_dwordx2 s[14:15], s[0:1], 48")
    common_ids(a)
    a("s_waitcnt lgkmcnt(0)")
    a.srd(4, 12, WS_SIZE)
    a.srd(8, 14, 1024)
    a.stamp()
    a("v_lshlrev_b32 v5, 6, v0")
    a("v_lshlrev_b32 v6, 4, v0")
    a("s_mov_b32 s16, 0x%x" % ST)
    ist = []
    for k in range(4):
        ist.append(a.vmem("buffer_load_dwordx4 v[%d:%d], v5, s[4:7], s16 offen offset:%d" % (64 + 4 * k, 67 + 4 * k, 16 * k)))
    a("s_mul_i32 s17, s2, %d" % (2 * XTS))
    a("s_add_u32 s18, s17, 0x%x" % XIN)
    a("s_add_u32 s19, s18, %d" % XTS)
    ix0 = a.vmem("buffer_load_dwordx4 v[32:35], v6, s[4:7], s18 offen")
    ix1 = a.vmem("buffer_load_dwordx4 v[36:39], v6, s[4:7], s19 offen")
    a("s_mul_i32 s20, s2, %d" % (2 * KSTRIDE))
    a("s_add_u32 s20, s20, 0x%x" % KREV)
    a("s_add_u32 s21, s20, %d" % KSTRIDE)
    a.vmem("buffer_load_dwordx4 v[40:43], v6, s[4:7], s20 offen")
    ik0 = a.vmem("buffer_load_dwordx4 v[44:47], v6, s[4:7], s20 offen offset:16")
    a.vmem("buffer_load_dwordx4 v[48:51], v6, s[4:7], s21 offen")
    ik1 = a.vmem("buffer_load_dwordx4 v[52:55], v6, s[4:7], s21 offen offset:16")
    a("s_lshl_b32 s22, s2, 2")
    a("v_mov_b32 v8, 0")
    idk = a.vmem("buffer_load_dword v56, v8, s[8:11], s22 offen")
    if PREFETCH:
        a("s_lshr_b32 s23, s2, 3")
        a("s_lshl_b32 s23, s23, 2")
        a("s_add_u32 s23, s23, s3")
        a("s_mul_i32 s23, s23, 14336")
        a("v_lshlrev_b32 v57, 6, v1")
        for base in (W1F, W2F):
            a("s_add_u32 s24, s23, 0x%x" % base)
            for k in range(4):
                a.vmem("buffer_load_dword v58, v57, s[4:7], s24 offen offset:%d" % (0 if k == 0 else 0))
                a("s_add_u32 s24, s24, %d" % (4096 if k < 2 else 2048))
    for k in range(4):
        a("v_mov_b32 v%d, 0" % (12 + k))
    a("v_mul_u32_u24 v7, %d, v0" % CSTR)
    a("v_cmp_gt_u32 vcc, 32, v0")
    a("s_and_saveexec_b64 s[24:25], vcc")
    a("ds_write_b128 v6, v[12:15] offset:%d" % UB)
    a("ds_write_b128 v6, v[12:15] offset:%d" % (UB + US))
    a("v_cmp_gt_u32 vcc, 16, v0")
    a("s_and_b64 exec, exec, vcc")
    a("ds_write_b128 v7, v[12:15] offset:%d" % (KC + 4096))
    a("s_mov_b64 exec, s[24:25]")
    a.wait_vm(ist[3])
    emit_ln_scalars_multi(a, [(64 + 2 * l, 65 + 2 * l, 200 + l, 208 + l, 216 + l) for l in range(8)])
    a.stamp()
    a.wait_vm(ix1)
    a("ds_write_b128 v6, v[32:35] offset:%d" % XS)
    a("ds_write_b128 v6, v[36:39] offset:%d" % (XS + XSS))
    for ch in range(2):
        xb = 32 + 4 * ch
        T = 16 + 0; Qr = 24
        for l in range(8):
            src = xb + l // 2
            d = T + l
            if l % 2 == 0:
                a("v_lshlrev_b32 v%d, 16, v%d" % (d, src))
            else:
                a("v_and_b32 v%d, 0xffff0000, v%d" % (d, src))
        for l in range(8):
            a("v_sub_f32 v%d, v%d, v%d" % (T + l, T + l, 200 + l))
        for k in range(4):
            a("v_cvt_pk_bf16_f32 v%d, v%d, v%d" % (Qr + k, T + 2 * k, T + 2 * k + 1))
        for l in range(8):
            if l % 2 == 0:
                a("v_lshlrev_b32 v%d, 16, v%d" % (T + l, Qr + l // 2))
            else:
                a("v_and_b32 v%d, 0xffff0000, v%d" % (T + l, Qr + l // 2))
        for l in range(8):
            a("v_mul_f32 v%d, v%d, v%d" % (Qr + l, T + l, 208 + l))
        for l in range(8):
            a("v_fma_f32 v%d, -v%d, v%d, v%d" % (T + l, Qr + l, 216 + l, T + l))
        for l in range(8):
            a("v_fma_f32 v%d, v%d, v%d, v%d" % (Qr + l, T + l, 208 + l, Qr + l))
        for k in range(4):
            a("v_cvt_pk_bf16_f32 v%d, v%d, v%d" % (12 + k, Qr + 2 * k, Qr + 2 * k + 1))
        a("ds_write_b128 v6, v[12:15] offset:%d" % (UB + ch * US + 512))
    a("v_add_u32 v7, %d, v6" % KC)
    for ch in range(2):
        kb = 40 + 8 * ch
        a.wait_vm(ik0 if ch == 0 else ik1)
        if ch == 1:
            a("v_add_u32 v7, %d, v7" % KCS)
        for s in range(8):
            o = s // 2
            if s in (0, 4):
                a("ds_write_b128 v7, v[%d:%d] offset:%d" % (kb + o, kb + o + 3, s * CSTR))
            else:
                t = 80 + 4 * s
                for k in range(4):
                    if s % 2 == 0:
                        a("v_mov_b32 v%d, v%d" % (t + k, kb + o + k))
                    else:
                        a("v_alignbit_b32 v%d, v%d, v%d, 16" % (t + k, kb + o + k + 1, kb + o + k))
                a("ds_write_b128 v7, v[%d:%d] offset:%d" % (t, t + 3, s * CSTR))
    a("s_lshr_b32 s26, s3, 1")
    a("s_and_b32 s27, s3, 1")
    a("s_lshl_b32 s29, s27, 8")
    a("v_and_b32 v9, 7, v2")
    a("v_sub_u32 v9, 7, v9")
    a("v_mul_u32_u24 v9, %d, v9" % CSTR)
    a("v_lshrrev_b32 v10, 3, v2")
    a("v_sub_u32 v10, v3, v10")
    a("v_lshl_add_u32 v9, v10, 4, v9")
    a("s_mul_i32 s28, s26, %d" % KCS)
    a("s_add_u32 s28, s28, %d" % (KC + 16 + 256))
    a("s_sub_u32 s28, s28, s29")
    a("v_add_u32 v9, s28, v9")
    a("v_lshlrev_b32 v10, 5, v2")
    a("v_lshl_add_u32 v10, v3, 4, v10")
    a("s_mul_i32 s28, s26, %d" % US)
    a("s_add_u32 s28, s28, %d" % (UB + 32))
    a("s_sub_u32 s28, s28, s29")
    a("v_add_u32 v10, s28, v10")
    ACC = 64
    a("s_waitcnt lgkmcnt(0)")
    a.stamp()
    a("s_barrier")
    a.stamp()
    a.lg = 0
    AF = [96, 160]; BF = [128, 192]
    def issue_parts(e):
        buf = e % 2
        parts = []
        for k in range(8):
            parts.append(lambda k=k: a.lds("ds_read_b128 v[%d:%d], v10 offset:%d" % (BF[buf] + 4 * k, BF[buf] + 4 * k + 3, 512 * k + 32 * (14 - 2 * e))))
            parts.append(lambda k=k: a.lds("ds_read_b128 v[%d:%d], v9 offset:%d" % (AF[buf] + 4 * k, AF[buf] + 4 * k + 3, 512 * (7 - k) + 64 * (3 - e))))
        return parts
    for f in issue_parts(0): f()
    for e in range(4):
        buf = e % 2
        a("s_waitcnt lgkmcnt(0)")
        parts = issue_parts(e + 1) if e < 3 else []
        k = 0
        for c1 in range(8):
            for J in range(c1, 8):
                a("v_mfma_f32_16x16x32_bf16 a[%d:%d], v[%d:%d], v[%d:%d], %s" % (
                    4 * J, 4 * J + 3, AF[buf] + 4 * c1, AF[buf] + 4 * c1 + 3,
                    BF[buf] + 4 * (J - c1), BF[buf] + 4 * (J - c1) + 3, "0" if (e == 0 and c1 == 0) else "a[%d:%d]" % (4 * J, 4 * J + 3)))
                k += 1
                if k % 2 == 0 and parts: parts.pop(0)()
        assert not parts
    a.stamp()
    a("v_lshlrev_b32 v11, 4, v1")
    a("s_lshl_b32 s28, s3, 12")
    a("v_add_u32 v12, s28, v11")
    a("s_xor_b32 s28, s3, 1")
    a("s_lshl_b32 s28, s28, 12")
    a("v_add_u32 v13, s28, v11")
    a("v_lshlrev_b32 v14, 5, v2")
    a("v_lshl_add_u32 v14, v3, 3, v14")
    a("s_lshl_b32 s28, s27, 11")
    a("v_add_u32 v14, s28, v14")
    a("s_mul_i32 s28, s26, %d" % US)
    a("v_add_u32 v15, s28, v14")
    a("s_lshl_b32 s28, s26, 12")
    a("v_add_u32 v16, s28, v14")
    a("s_mul_i32 s28, s26, %d" % XTS)
    a("v_add_u32 v17, s28, v14")
    for Jl in range(4):
        a("ds_read_b64 v[%d:%d], v15 offset:%d" % (32 + 2 * Jl, 33 + 2 * Jl, UB + 512 + 512 * Jl))
        a("ds_read_b64 v[%d:%d], v16 offset:%d" % (40 + 2 * Jl, 41 + 2 * Jl, XS + 512 * Jl))
    a("s_cmp_eq_u32 s27, 0")
    a("s_cbranch_scc1 L_%s_h0" % name)
    for Jl in range(4):
        a("ds_write_b128 v12, a[%d:%d] offset:%d" % (4 * Jl, 4 * Jl + 3, SCR + 1024 * Jl))
    for r in range(16):
        a("v_accvgpr_read_b32 v%d, a%d" % (ACC + r, 16 + r))
    a("s_branch L_%s_h1" % name)
    a.label("L_%s_h0" % name)
    for Jl in range(4):
        a("ds_write_b128 v12, a[%d:%d] offset:%d" % (16 + 4 * Jl, 16 + 4 * Jl + 3, SCR + 1024 * Jl))
    for r in range(16):
        a("v_accvgpr_read_b32 v%d, a%d" % (ACC + r, r))
    a.label("L_%s_h1" % name)
    a("s_waitcnt lgkmcnt(0)")
    a("s_barrier")
    for Jl in range(4):
        a("ds_read_b128 v[%d:%d], v13 offset:%d" % (96 + 4 * Jl, 99 + 4 * Jl, SCR + 1024 * Jl))
    a("s_waitcnt vmcnt(0)")
    a("v_lshlrev_b32 v57, 16, v56")
    a("v_and_b32 v58, 0xffff0000, v56")
    a("s_cmp_eq_u32 s26, 0")
    a("s_cbranch_scc1 L_%s_c0" % name)
    a("v_mov_b32 v57, v58")
    a.label("L_%s_c0" % name)
    a("s_waitcnt lgkmcnt(0)")
    a("s_add_u32 s18, s17, 0x%x" % XOUT)
    for Jl in range(4):
        for i in range(4):
            y = ACC + 4 * Jl + i
            a("v_add_f32 v%d, v%d, v%d" % (y, y, 96 + 4 * Jl + i))
            us = 32 + 2 * Jl + i // 2
            xs = 40 + 2 * Jl + i // 2
            if i % 2 == 0:
                a("v_lshlrev_b32 v%d, 16, v%d" % (20 + i, us))
                a("v_lshlrev_b32 v%d, 16, v%d" % (24 + i, xs))
            else:
                a("v_and_b32 v%d, 0xffff0000, v%d" % (20 + i, us))
                a("v_and_b32 v%d, 0xffff0000, v%d" % (24 + i, xs))
            a("v_mul_f32 v%d, v%d, v57" % (20 + i, 20 + i))
        for i in range(4):
            a.bfr(ACC + 4 * Jl + i, ACC + 4 * Jl + i)
            a.bfr(20 + i, 20 + i)
        for i in range(4):
            a("v_add_f32 v%d, v%d, v%d" % (20 + i, 20 + i, ACC + 4 * Jl + i))
        for i in range(4):
            a.bfr(20 + i, 20 + i)
        for i in range(4):
            a("v_add_f32 v%d, v%d, v%d" % (20 + i, 20 + i, 24 + i))
        a("v_cvt_pk_bf16_f32 v%d, v20, v21" % (48 + 2 * Jl))
        a("v_cvt_pk_bf16_f32 v%d, v22, v23" % (49 + 2 * Jl))
        a("buffer_store_dwordx2 v[%d:%d], v17, s[4:7], s18 offen offset:%d sc1" % (48 + 2 * Jl, 49 + 2 * Jl, 512 * Jl))
    a("s_cmp_lg_u32 s2, 0")
    a("s_cbranch_scc1 L_%s_nf" % name)
    a("v_mov_b32 v8, 0")
    a("s_mov_b32 s20, 0x%x" % FLG)
    a("buffer_load_dword v9, v8, s[4:7], s20 offen")
    a("s_waitcnt vmcnt(0)")
    a("buffer_store_dword v9, v8, s[4:7], s20 offen offset:4")
    a.label("L_%s_nf" % name)
    a.stamp_flush(slot)
    a.label("L_%s_end" % name)
    a("s_endpgm")
    return a.text(), kernel_desc(name, 224, agpr=32), KC + 2 * KCS
```

```python
import re
from asmlib import *
from gen_prep import *
from gen_conv import emit_ln_scalars, emit_ln_scalars_multi

def gen_gemm1(name, XIN, slot=1):
    a = Asm()
    a.raw(kernel_header(name))
    STL = 131072
    a("s_cmp_ge_u32 s2, 224")
    a("s_cbranch_scc1 L_%s_end" % name)
    a("s_load_dwordx2 s[12:13], s[0:1], 96")
    common_ids(a)
    a("s_and_b32 s16, s2, 7")
    a("s_lshl_b32 s16, s16, 1")
    a("s_bfe_u32 s17, s2, 0x10003")
    a("s_add_u32 s16, s16, s17")
    a("s_lshr_b32 s17, s2, 4")
    for e in range(2):
        a("v_add_u32 v7, %d, v3" % (4 * e))
        a("v_lshlrev_b32 v8, 1, v7")
        a("v_xor_b32 v8, v8, v2")
        a("v_lshlrev_b32 v8, 4, v8")
        a("v_mul_u32_u24 v7, %d, v7" % XTS)
        a("v_add_u32 v%d, v7, v8" % (5 + e))
    a("s_mul_i32 s18, s3, %d" % (8 * XTS))
    a("s_lshl_b32 s19, s16, 8")
    a("s_add_u32 s18, s18, s19")
    a("s_add_u32 s18, s18, 0x%x" % XIN)
    a("s_lshl_b32 s20, s3, 11")
    a("v_lshlrev_b32 v9, 4, v1")
    a("s_lshl_b32 s21, s17, 2")
    a("s_add_u32 s21, s21, s3")
    a("s_mov_b32 s24, s21")
    a("s_lshl_b32 s21, s21, 15")
    a("s_add_u32 s21, s21, 0x%x" % W1F)
    a("v_lshlrev_b32 v10, 4, v3")
    a("s_lshl_b32 s22, s24, 7")
    a("s_add_u32 s22, s22, 0x%x" % CS)
    a("s_waitcnt lgkmcnt(0)")
    a.srd(4, 12, WS_SIZE)
    a.stamp()
    CSR = 240
    LOOK = 5
    WR = 168
    NW = 6
    last = {}
    def issue_parts(ks):
        def dma(e):
            def f():
                a("s_add_u32 s23, s20, %d" % (ks * 8192 + e * 1024))
                a("s_mov_b32 m0, s23")
                a.nop(1)
                a.vmem("buffer_load_dwordx4 v%d, s[4:7], s18 offen lds" % (5 + e))
                if e == 1:
                    a("s_add_u32 s18, s18, %d" % (32 * XTS))
            return f
        w = WR + (ks % NW) * 8
        def w0():
            a.vmem("buffer_load_dwordx4 v[%d:%d], v9, s[4:7], s21 offen" % (w, w + 3))
        def w1():
            last[ks] = a.vmem("buffer_load_dwordx4 v[%d:%d], v9, s[4:7], s21 offen offset:1024" % (w + 4, w + 7))
            a("s_add_u32 s21, s21, 2048")
        return [dma(0), dma(1), w0, w1]
    for ks in range(LOOK):
        for f in issue_parts(ks): f()
    a.vmem("buffer_load_dwordx4 v[%d:%d], v10, s[4:7], s22 offen" % (CSR, CSR + 3))
    a.vmem("buffer_load_dwordx4 v[%d:%d], v10, s[4:7], s22 offen offset:64" % (CSR + 4, CSR + 7))
    a("s_cmp_gt_u32 s2, 16")
    a("s_cbranch_scc1 L_%s_nz" % name)
    a("v_mov_b32 v40, 0")
    a("v_lshlrev_b32 v41, 2, v0")
    a("s_lshl_b32 s25, s2, 10")
    a("s_add_u32 s25, s25, 0x%x" % ST0)
    a("s_cmp_eq_u32 s2, 16")
    a("s_cbranch_scc0 L_%s_zs" % name)
    a("v_mov_b32 v40, 1")
    a("v_mov_b32 v41, 0")
    a("s_mov_b32 s25, 0x%x" % FLG)
    a.label("L_%s_zs" % name)
    a("buffer_store_dword v40, v41, s[4:7], s25 offen")
    a("s_waitcnt vmcnt(0)")
    a.label("L_%s_nz" % name)
    a("v_lshrrev_b32 v20, 2, v2")
    a("v_and_b32 v21, 3, v2")
    a("v_lshl_add_u32 v22, v3, 2, v20")
    a("v_and_b32 v23, 7, v22")
    a("v_lshlrev_b32 v22, 8, v22")
    a("v_and_b32 v24, 1, v21")
    a("v_lshl_add_u32 v22, v24, 3, v22")
    a("v_lshrrev_b32 v24, 1, v21")
    a("s_lshl_b32 s26, s3, 1")
    for lam in range(8):
        a("s_add_u32 s25, s26, %d" % lam)
        a("s_and_b32 s25, s25, 7")
        a("v_xor_b32 v25, s25, v23")
        a("v_lshl_add_u32 v25, v25, 1, v24")
        a("v_lshl_add_u32 v%d, v25, 4, v22" % (12 + lam))
    BF = [96, 128]
    a("s_mov_b32 s25, 0x%x" % ONES_BF)
    for r in range(4):
        a("v_mov_b32 v%d, s25" % (160 + r))
    def rd_parts(ks):
        buf = ks % 2
        parts = []
        if ks == 8:
            def bump():
                for lam in range(8):
                    a("v_add_u32 v%d, 0x10000, v%d" % (12 + lam, 12 + lam))
            parts.append(bump)
        for lam in range(8):
            for rho in range(2):
                r = BF[buf] + 4 * lam + 2 * rho
                parts.append(lambda r=r, lam=lam, rho=rho: a.lds("ds_read_b64_tr_b16 v[%d:%d], v%d offset:%d" % (r, r + 1, 12 + lam, (ks % 8) * 8192 + rho * 4096)))
        return parts
    a.stamp()
    a.wait_vm(last[1])
    a("s_barrier")
    a.stamp()
    for f in rd_parts(0): f()
    for ks in range(16):
        buf = ks % 2
        a("s_waitcnt lgkmcnt(0)")
        rparts = []
        if ks + 1 < 16:
            if ks % 2 == 1:
                a.wait_vm(last[min(ks + 2, 15)])
                a("s_barrier")
            rparts = rd_parts(ks + 1)
        parts = issue_parts(ks + LOOK) if ks + LOOK < 16 else []
        w = WR + (ks % NW) * 8
        mf = []
        for lam in range(8):
            for T in range(2):
                c = (T * 8 + lam) * 4
                mf.append("v_mfma_f32_16x16x32_bf16 a[%d:%d], v[%d:%d], v[%d:%d], a[%d:%d]" % (
                    c, c + 3, w + 4 * T, w + 4 * T + 3, BF[buf] + 4 * lam, BF[buf] + 4 * lam + 3, c, c + 3))
        for h in range(2):
            b = BF[buf] + 4 * h
            mf.append("v_mfma_f32_16x16x32_bf16 a[%d:%d], v[160:163], v[%d:%d], a[%d:%d]" % (64 + 4 * h, 67 + 4 * h, b, b + 3, 64 + 4 * h, 67 + 4 * h))
            mf.append("v_mfma_f32_16x16x32_bf16 a[%d:%d], v[%d:%d], v[%d:%d], a[%d:%d]" % (72 + 4 * h, 75 + 4 * h, b, b + 3, b, b + 3, 72 + 4 * h, 75 + 4 * h))
        if ks == 15:
            mf = mf[16:] + mf[:16]
        if ks == 0:
            mf = [re.sub(r", a\[\d+:\d+\]$", ", 0", m) for m in mf]
        for k, m in enumerate(mf):
            a(m)
            if rparts: rparts.pop(0)()
            if k % 4 == 1 and parts: parts.pop(0)()
        while rparts: rparts.pop(0)()
        assert not parts
    a.stamp()
    a("v_and_b32 v20, 3, v2")
    for h in range(2):
        a("v_accvgpr_read_b32 v%d, a%d" % (164 + 2 * h, 64 + 4 * h))
        a("v_accvgpr_read_b32 v%d, a%d" % (165 + 2 * h, 72 + 4 * h))
        for i in range(1, 4):
            a("v_accvgpr_read_b32 v21, a%d" % (72 + 4 * h + i))
            a("v_cmp_eq_u32 vcc, %d, v20" % i)
            a.nop(2)
            a("v_cndmask_b32 v%d, v%d, v21, vcc" % (165 + 2 * h, 165 + 2 * h))
    emit_ln_scalars_multi(a, [(164 + 2 * h, 165 + 2 * h, 176 + 2 * h, 177 + 2 * h, 180 + h) for h in range(2)])
    for h in range(2):
        a("v_mul_f32 v%d, v%d, v%d" % (176 + 2 * h, 176 + 2 * h, 177 + 2 * h))
    a("v_lshlrev_b32 v20, 3, v2")
    a("v_add_u32 v20, 0x%x, v20" % STL)
    a("s_lshl_b32 s25, s3, 8")
    a("v_add_u32 v21, s25, v20")
    a("v_lshrrev_b32 v22, 2, v2")
    a("v_cmp_eq_u32 vcc, v22, v3")
    a("s_and_saveexec_b64 s[26:27], vcc")
    a("ds_write_b64 v21, v[176:177] offset:%d" % 0)
    a("ds_write_b64 v21, v[178:179] offset:%d" % 128)
    a("s_mov_b64 exec, s[26:27]")
    a("s_waitcnt lgkmcnt(0)")
    a("s_barrier")
    for lam in range(8):
        a("s_lshl_b32 s25, s3, 1")
        a("s_add_u32 s25, s25, %d" % lam)
        a("s_and_b32 s25, s25, 7")
        a("s_lshl_b32 s%d, s25, 7" % (32 + lam))
        a("s_mul_i32 s%d, s25, %d" % (40 + lam, 56 * 1024))
        a("v_add_u32 v21, s%d, v20" % (32 + lam))
        a("ds_read_b64 v[%d:%d], v21" % (96 + 2 * lam, 97 + 2 * lam))
    a("s_mul_i32 s25, s16, %d" % (8 * 56))
    a("s_add_u32 s25, s25, s24")
    a("s_lshl_b32 s25, s25, 10")
    a("s_add_u32 s25, s25, 0x%x" % HB)
    for lam in range(8):
        a("s_add_u32 s%d, s%d, s25" % (40 + lam, 40 + lam))
    a("s_waitcnt vmcnt(0) lgkmcnt(0)")
    for lam in range(8):
        mr = 96 + 2 * lam; rs = mr + 1
        tb = 28 + 8 * (lam % 4)
        for T in range(2):
            c = (T * 8 + lam) * 4
            for i in range(4):
                a("v_accvgpr_read_b32 v%d, a%d" % (tb + 4 * T + i, c + i))
        for i in range(0, 8, 2):
            a("v_pk_mul_f32 v[%d:%d], v[%d:%d], v[%d:%d] op_sel_hi:[1,0]" % (tb + i, tb + i + 1, tb + i, tb + i + 1, rs - 1, rs) if False else
              "v_pk_mul_f32 v[%d:%d], v[%d:%d], v[%d:%d] op_sel:[0,1] op_sel_hi:[1,1]" % (tb + i, tb + i + 1, tb + i, tb + i + 1, mr, mr + 1))
        for i in range(0, 8, 2):
            a("v_pk_fma_f32 v[%d:%d], v[%d:%d], v[%d:%d], v[%d:%d] op_sel_hi:[1,0,1] neg_lo:[0,1,0] neg_hi:[0,1,0]" % (
                tb + i, tb + i + 1, CSR + i, CSR + i + 1, mr, mr + 1, tb + i, tb + i + 1))
        o = 128 + 4 * (lam % 4)
        for i in range(4):
            a("v_cvt_pk_bf16_f32 v%d, v%d, v%d" % (o + i, tb + 2 * i, tb + 2 * i + 1))
        for i in range(4):
            a("v_pk_max_i16 v%d, v%d, 0" % (o + i, o + i))
        a("buffer_store_dwordx4 v[%d:%d], v9, s[4:7], s%d offen" % (o, o + 3, 40 + lam))
    a.stamp_flush(slot)
    a.label("L_%s_end" % name)
    a("s_endpgm")
    return a.text(), kernel_desc(name, 248, agpr=80), 131072 + 1024

def gen_gemm2(name, XRES, XOUT, STOUT, slot=2):
    a = Asm()
    a.raw(kernel_header(name))
    RS = 272; RW = 64 * RS
    OT = 0; RB = 9216
    a("s_cmp_ge_u32 s2, 256")
    a("s_cbranch_scc1 L_%s_end" % name)
    a("s_load_dwordx2 s[12:13], s[0:1], 96")
    a("s_load_dwordx2 s[14:15], s[0:1], 80")
    common_ids(a)
    a("s_and_b32 s16, s2, 7")
    a("s_lshl_b32 s16, s16, 2")
    a("s_bfe_u32 s17, s2, 0x20003")
    a("s_add_u32 s16, s16, s17")
    a("s_lshr_b32 s17, s2, 5")
    a("v_lshlrev_b32 v5, 4, v1")
    for t in range(1, 4):
        a("v_add_u32 v%d, %d, v5" % (5 + t, t * 57344))
    a("s_mul_i32 s18, s16, %d" % (4 * 56))
    a("s_mul_i32 s19, s3, 14")
    a("s_add_u32 s18, s18, s19")
    a("s_lshl_b32 s18, s18, 10")
    a("s_add_u32 s18, s18, 0x%x" % HB)
    a("s_mul_i32 s20, s17, 56")
    a("s_add_u32 s20, s20, s19")
    a("s_lshl_b32 s20, s20, 12")
    a("s_add_u32 s20, s20, 0x%x" % W2F)
    a("v_mul_u32_u24 v9, %d, v1" % XTS)
    a("s_mul_i32 s21, s17, %d" % (64 * XTS))
    a("s_lshl_b32 s22, s16, 7")
    a("s_add_u32 s21, s21, s22")
    a("s_lshl_b32 s22, s3, 5")
    a("s_add_u32 s21, s21, s22")
    a("s_add_u32 s22, s21, 0x%x" % XRES)
    a("s_mov_b32 s31, 0x%x" % (FLG + 4))
    a("s_waitcnt lgkmcnt(0)")
    a.srd(4, 12, WS_SIZE)
    a.stamp()
    DEPTH = 7
    PRE = 3
    RING = 24
    last = {}
    def issue_parts(ks):
        b = RING + (ks % DEPTH) * 32
        parts = []
        for t in range(4):
            def fa(t=t):
                a.vmem("buffer_load_dwordx4 v[%d:%d], v%d, s[4:7], s18 offen" % (b + 4 * t, b + 4 * t + 3, 5 + t))
            parts.append(fa)
            def fb(t=t):
                last[ks] = a.vmem("buffer_load_dwordx4 v[%d:%d], v5, s[4:7], s20 offen offset:%d" % (b + 16 + 4 * t, b + 19 + 4 * t, 1024 * t))
                if t == 3:
                    a("s_add_u32 s18, s18, 1024")
                    a("s_add_u32 s20, s20, 4096")
            parts.append(fb)
        return parts
    for ks in range(PRE):
        for f in issue_parts(ks): f()
    a.vmem("buffer_load_dwordx4 v[12:15], v9, s[4:7], s22 offen")
    a.vmem("buffer_load_dwordx4 v[16:19], v9, s[4:7], s22 offen offset:16")
    a("s_buffer_load_dword s30, s[4:7], s31")
    a.srd(8, 14, 0x200000)
    a("v_mul_u32_u24 v10, %d, v2" % RS)
    a("v_lshl_add_u32 v10, v3, 4, v10")
    a("s_mul_i32 s23, s3, %d" % RW)
    a("s_add_u32 s23, s23, %d" % RB)
    a("v_add_u32 v10, s23, v10")
    a("v_mul_u32_u24 v11, %d, v1" % RS)
    a("s_lshl_b32 s23, s3, 6")
    a("v_add_u32 v11, s23, v11")
    a.stamp()
    nxt = PRE
    for ks in range(14):
        parts = []
        while nxt < 14 and nxt < ks + DEPTH and len(parts) < 16:
            parts += issue_parts(nxt); nxt += 1
        a.wait_vm(last[ks])
        if ks == 0: a.stamp()
        b = RING + (ks % DEPTH) * 32
        k = 0
        per = 1 if len(parts) > 8 else 2
        for ta in range(4):
            for tb in range(4):
                c = (ta * 4 + tb) * 4
                a("v_mfma_f32_16x16x32_bf16 a[%d:%d], v[%d:%d], v[%d:%d], %s" % (
                    c, c + 3, b + 4 * ta, b + 4 * ta + 3, b + 16 + 4 * tb, b + 19 + 4 * tb, "0" if ks == 0 else "a[%d:%d]" % (c, c + 3)))
                k += 1
                if k % per == 0 and parts:
                    parts.pop(0)()
                if ks == 13 and k >= 9:
                    kk = k - 9
                    ta2, tb2 = kk // 4, kk % 4
                    c2 = (ta2 * 4 + tb2) * 4
                    a("ds_write_b128 v10, a[%d:%d] offset:%d" % (c2, c2 + 3, tb2 * 16 * RS + ta2 * 64))
        assert not parts
    a.stamp()
    a.nop(4)
    for kk in range(8, 16):
        ta2, tb2 = kk // 4, kk % 4
        c2 = (ta2 * 4 + tb2) * 4
        if kk == 12: a.nop(4)
        a("ds_write_b128 v10, a[%d:%d] offset:%d" % (c2, c2 + 3, tb2 * 16 * RS + ta2 * 64))
    a("s_waitcnt lgkmcnt(0)")
    a("s_barrier")
    for p in range(4):
        for k in range(4):
            a("ds_read_b128 v[%d:%d], v11 offset:%d" % (32 + 16 * p + 4 * k, 35 + 16 * p + 4 * k, RB + p * RW + 16 * k))
    for k in range(16):
        src = 12 + k // 2
        if k % 2 == 0:
            a("v_lshlrev_b32 v%d, 16, v%d" % (96 + k, src))
        else:
            a("v_and_b32 v%d, 0xffff0000, v%d" % (96 + k, src))
    a("s_waitcnt lgkmcnt(8)")
    for k in range(0, 16, 2):
        a("v_pk_add_f32 v[%d:%d], v[%d:%d], v[%d:%d]" % (32 + k, 33 + k, 32 + k, 33 + k, 48 + k, 49 + k))
    a("s_waitcnt lgkmcnt(0)")
    for k in range(0, 16, 2):
        a("v_pk_add_f32 v[%d:%d], v[%d:%d], v[%d:%d]" % (64 + k, 65 + k, 64 + k, 65 + k, 80 + k, 81 + k))
    for k in range(0, 16, 2):
        a("v_pk_add_f32 v[%d:%d], v[%d:%d], v[%d:%d]" % (32 + k, 33 + k, 32 + k, 33 + k, 64 + k, 65 + k))
    for k in range(8):
        a("v_cvt_pk_bf16_f32 v%d, v%d, v%d" % (48 + k, 32 + 2 * k, 33 + 2 * k))
    for k in range(16):
        src = 48 + k // 2
        if k % 2 == 0:
            a("v_lshlrev_b32 v%d, 16, v%d" % (32 + k, src))
        else:
            a("v_and_b32 v%d, 0xffff0000, v%d" % (32 + k, src))
    for k in range(0, 16, 2):
        a("v_pk_add_f32 v[%d:%d], v[%d:%d], v[%d:%d]" % (32 + k, 33 + k, 32 + k, 33 + k, 96 + k, 97 + k))
    for k in range(8):
        a("v_cvt_pk_bf16_f32 v%d, v%d, v%d" % (64 + k, 32 + 2 * k, 33 + 2 * k))
    a("s_cmp_lg_u32 s30, 0")
    a("s_cbranch_scc1 L_%s_final" % name)
    a("s_add_u32 s22, s21, 0x%x" % XOUT)
    a("buffer_store_dwordx4 v[64:67], v9, s[4:7], s22 offen sc1")
    a("buffer_store_dwordx4 v[68:71], v9, s[4:7], s22 offen offset:16 sc1")
    for k in range(16):
        src = 64 + k // 2
        if k % 2 == 0:
            a("v_lshlrev_b32 v%d, 16, v%d" % (32 + k, src))
        else:
            a("v_and_b32 v%d, 0xffff0000, v%d" % (32 + k, src))
    for k in range(0, 16, 2):
        a("v_pk_mul_f32 v[%d:%d], v[%d:%d], v[%d:%d]" % (48 + k, 49 + k, 32 + k, 33 + k, 32 + k, 33 + k))
    a.nop(2)
    for k in range(16):
        a("v_permlane32_swap_b32 v%d, v%d" % (32 + k, 48 + k))
    for k in range(0, 16, 2):
        a("v_pk_add_f32 v[%d:%d], v[%d:%d], v[%d:%d]" % (32 + k, 33 + k, 32 + k, 33 + k, 48 + k, 49 + k))
    a.nop(2)
    for k in range(8):
        a("v_permlane16_swap_b32 v%d, v%d" % (32 + k, 40 + k))
    for k in range(0, 8, 2):
        a("v_pk_add_f32 v[%d:%d], v[%d:%d], v[%d:%d]" % (32 + k, 33 + k, 32 + k, 33 + k, 40 + k, 41 + k))
    for rot in (8, 4, 2, 1):
        a.nop(1)
        for k in range(8):
            a("v_add_f32_dpp v%d, v%d, v%d row_ror:%d row_mask:0xf bank_mask:0xf" % (32 + k, 32 + k, 32 + k, rot))
    for k in range(1, 8):
        a("v_cmp_eq_u32 vcc, %d, v2" % k)
        a.nop(2)
        a("v_cndmask_b32 v32, v32, v%d, vcc" % (32 + k))
    a("v_and_b32 v13, 1, v3")
    a("v_lshl_add_u32 v13, v13, 3, v2")
    a("v_lshlrev_b32 v13, 3, v13")
    a("v_lshrrev_b32 v14, 1, v3")
    a("v_lshl_add_u32 v13, v14, 2, v13")
    a("s_lshl_b32 s22, s16, 9")
    a("s_lshl_b32 s23, s3, 7")
    a("s_add_u32 s22, s22, s23")
    a("s_add_u32 s22, s22, 0x%x" % STOUT)
    a("v_cmp_gt_u32 vcc, 8, v2")
    a("s_and_saveexec_b64 s[26:27], vcc")
    a("buffer_atomic_add_f32 v32, v13, s[4:7], s22 offen")
    a.stamp_flush(slot); a.nst = getattr(a, "nst", 1) - 1
    a("s_endpgm")
    a.label("L_%s_final" % name)
    a("v_mul_u32_u24 v12, 144, v1")
    a("s_lshl_b32 s23, s3, 5")
    a("v_add_u32 v12, s23, v12")
    a("ds_write_b128 v12, v[64:67] offset:%d" % OT)
    a("ds_write_b128 v12, v[68:71] offset:%d" % (OT + 16))
    a("v_lshrrev_b32 v13, 2, v2")
    a("v_lshl_add_u32 v13, v3, 3, v13")
    a("v_mul_u32_u24 v13, 144, v13")
    a("v_and_b32 v14, 3, v2")
    a("v_lshl_add_u32 v13, v14, 3, v13")
    a("v_add_u32 v13, s23, v13")
    a("s_waitcnt lgkmcnt(0)")
    a("ds_read_b64_tr_b16 v[72:73], v13 offset:%d" % OT)
    a("ds_read_b64_tr_b16 v[74:75], v13 offset:%d" % (OT + 576))
    a("ds_read_b64_tr_b16 v[76:77], v13 offset:%d" % (OT + 4608))
    a("ds_read_b64_tr_b16 v[78:79], v13 offset:%d" % (OT + 5184))
    a("s_lshl_b32 s23, s3, 4")
    a("v_add_u32 v14, s23, v2")
    a("v_lshlrev_b32 v14, 10, v14")
    a("v_lshl_add_u32 v14, v3, 4, v14")
    a("s_lshl_b32 s22, s16, 16")
    a("s_lshl_b32 s23, s17, 7")
    a("s_add_u32 s22, s22, s23")
    a("s_waitcnt lgkmcnt(0)")
    a("buffer_store_dwordx4 v[72:75], v14, s[8:11], s22 offen sc1")
    a("buffer_store_dwordx4 v[76:79], v14, s[8:11], s22 offen offset:64 sc1")
    a.stamp_flush(slot)
    a.label("L_%s_end" % name)
    a("s_endpgm")
    return a.text(), kernel_desc(name, 248, agpr=64), RB + 4 * RW
```
